```python
import torch

def _softmax(x, axis=-1):
    return torch.softmax(x, dim=axis)
def _gelu(x):
    return torch.nn.functional.gelu(x, approximate="tanh")
def _silu(x):
    return torch.nn.functional.silu(x)
def _sigmoid(x):
    return torch.sigmoid(x)
def _layernorm(x, axis=-1, eps=1e-5):
    m = x.mean(dim=axis, keepdim=True)
    v = x.var(dim=axis, keepdim=True, unbiased=False)
    return (x - m) / torch.sqrt(v + eps)
def _scatter_add(tgt, idx, src, axis=0):
    return tgt.clone().index_add_(axis, idx, src)
def _segment_sum(src, seg, n):
    out = torch.zeros((n,) + src.shape[1:], dtype=src.dtype)
    return out.index_add_(0, seg, src)
def _pad(x, pw):
    flat = tuple(v for pair in reversed(pw) for v in pair)
    return torch.nn.functional.pad(x, flat)

kernel_name = 'sequential_preLN__spectral_gfnet__mixer_channel_mlp__prompt'

def setup_inputs():

    _w = (lambda a: (lambda t: t.to(torch.bfloat16) if t.is_floating_point() else t)(torch.as_tensor(a)))
    def _A_setup():
        B, S, D = 1, 2048, 640
        Df = D // 2 + 1
        return {
            "x": _w((lambda *s: torch.randn(*s, dtype=torch.bfloat16) * 0.05)(B, S, D)),
            "w_r": _w((lambda *s: torch.randn(*s, dtype=torch.bfloat16) * 0.8)(S, Df) * 0.02),
            "w_i": _w((lambda *s: torch.randn(*s, dtype=torch.bfloat16) * 0.8)(S, Df) * 0.02),
        }
    _A_in = _A_setup()

    def _B_setup():
        B, S, D, F = 1, 2048, 640, 1728
        return {
            "x": _w((lambda *s: torch.randn(*s, dtype=torch.bfloat16) * 0.05)(B, S, D)),
            "w1": _w((lambda *s: torch.randn(*s, dtype=torch.bfloat16) * 0.8)(D, F) * (D ** -0.5)),
            "b1": _w((lambda *s: torch.randn(*s, dtype=torch.bfloat16) * 0.4)(F)),
            "w2": _w((lambda *s: torch.randn(*s, dtype=torch.bfloat16) * 0.05)(F, D) * (F ** -0.5)),
            "b2": _w((lambda *s: torch.randn(*s, dtype=torch.bfloat16) * 0.05)(D)),
        }
    _B_in = _B_setup()

    return {
        "A_x": _A_in["x"],
        "A_w_r": _A_in["w_r"],
        "A_w_i": _A_in["w_i"],
        "B_x": _B_in["x"],
        "B_w1": _B_in["w1"],
        "B_b1": _B_in["b1"],
        "B_w2": _B_in["w2"],
        "B_b2": _B_in["b2"],
    }

def reference(A_x, A_w_r, A_w_i, B_x, B_w1, B_b1, B_w2, B_b2):
    def _A_ref(x, w_r, w_i):
        B, S, D = x.shape
        X = (lambda x, axes=(-2,-1): torch.fft.rfft2(x.float(), dim=axes))(x, axes=(-2, -1))
        W = w_r + 1j * w_i
        X = X * W
        y = (lambda x, s, axes=(-2,-1): torch.fft.irfft2(x, s=s, dim=axes).to(torch.bfloat16))(X, (S, D), axes=(-2, -1))
        return y

    def _B_ref(x, w1, b1, w2, b2):
        y = _layernorm(x, axis=-1)
        h = _gelu(torch.einsum("bsd,df->bsf", y, w1) + b1)
        return torch.einsum("bsf,fd->bsd", h, w2) + b2

    x = A_x
    h = x + _A_ref(_layernorm(x, axis=-1), A_w_r, A_w_i)
    h2 = h + _B_ref(_layernorm(h, axis=-1), B_w1, B_b1, B_w2, B_b2)
    return h2
```

```python
import re, math
import numpy as np

class Pool:
    def __init__(self, lo, hi, name="v"):
        self.free = set(range(lo, hi)); self.lo = lo; self.hi = hi; self.name = name
        self.high = lo
    def alloc(self, n=1, align=None):
        if align is None:
            align = 1 if n == 1 else (2 if n == 2 else 4 if n == 4 else (2 if n % 2 == 0 else 1))
        for b in range(self.lo, self.hi):
            if b % align: continue
            if all((b + i) in self.free for i in range(n)):
                for i in range(n): self.free.discard(b + i)
                self.high = max(self.high, b + n)
                return b
        raise RuntimeError(f"out of {self.name} regs (n={n})")
    def release(self, b, n=1):
        for i in range(n):
            assert (b + i) not in self.free, f"double free {self.name}{b+i}"
            self.free.add(b + i)

class Kern:
    def __init__(self, name, vlo=0, vhi=256, slo=4, shi=100):
        self.name = name
        self.L = []
        self.v = Pool(vlo, vhi, "v")
        self.s = Pool(slo, shi, "s")
        self.lblc = 0
    def I(self, s): self.L.append("    " + s)
    def C(self, s): self.L.append("    ; " + s)
    def lab(self, s): self.L.append(s + ":")
    def newlabel(self, base="L"):
        self.lblc += 1
        return f"{self.name}_{base}{self.lblc}"
    def nop(self, n=1):
        while n > 0:
            k = min(n, 8); self.I(f"s_nop {k-1}"); n -= k
    def text(self): return "\n".join(self.L) + "\n"
    def pair(self): return self.v.alloc(2, 2)
    def fpair(self, p): self.v.release(p, 2)
    def quad(self): return self.v.alloc(4, 4)
    @staticmethod
    def P(r): return f"v[{r}:{r+1}]"
    def cadd(self, d, a, b):
        self.I(f"v_pk_add_f32 {self.P(d)}, {self.P(a)}, {self.P(b)}")
    def csub(self, d, a, b):
        self.I(f"v_pk_add_f32 {self.P(d)}, {self.P(a)}, {self.P(b)} neg_lo:[0,1] neg_hi:[0,1]")
    def cadd_pi(self, d, a, b):
        self.I(f"v_pk_add_f32 {self.P(d)}, {self.P(a)}, {self.P(b)} op_sel:[0,1] op_sel_hi:[1,0] neg_lo:[0,1]")
    def cadd_mi(self, d, a, b):
        self.I(f"v_pk_add_f32 {self.P(d)}, {self.P(a)}, {self.P(b)} op_sel:[0,1] op_sel_hi:[1,0] neg_hi:[0,1]")
    def cadd_si(self, d, a, b, sg):
        (self.cadd_pi if sg > 0 else self.cadd_mi)(d, a, b)
    def cmul(self, d, a, w, conj=False, t=None):
        own = t is None
        if own: t = self.pair()
        self.I(f"v_pk_mul_f32 {self.P(t)}, {self.P(a)}, {self.P(w)} op_sel:[0,0] op_sel_hi:[1,0]")
        ng = "neg_hi:[1,0,0]" if conj else "neg_lo:[1,0,0]"
        self.I(f"v_pk_fma_f32 {self.P(d)}, {self.P(a)}, {self.P(w)}, {self.P(t)} op_sel:[1,1,0] op_sel_hi:[0,1,1] {ng}")
        if own: self.fpair(t)
    def kmul(self, d, a, K, sel=0):
        self.I(f"v_pk_mul_f32 {self.P(d)}, {self.P(a)}, {self.P(K)} op_sel:[0,{sel}] op_sel_hi:[1,{sel}]")
    def kfma(self, d, a, K, c, sel=0, neg=False):
        ng = " neg_lo:[1,0,0] neg_hi:[1,0,0]" if neg else ""
        self.I(f"v_pk_fma_f32 {self.P(d)}, {self.P(a)}, {self.P(K)}, {self.P(c)} op_sel:[0,{sel},0] op_sel_hi:[1,{sel},1]{ng}")
    def kfma_i(self, d, a, K, c, sg, sel=0):
        ng = "neg_lo:[1,0,0]" if sg > 0 else "neg_hi:[1,0,0]"
        self.I(f"v_pk_fma_f32 {self.P(d)}, {self.P(a)}, {self.P(K)}, {self.P(c)} op_sel:[1,{sel},0] op_sel_hi:[0,{sel},1] {ng}")

    def dft4(self, x, sg):
        a0, a1, a2, a3 = x
        t = self.pair()
        self.csub(t, a0, a2)
        self.cadd(a0, a0, a2)
        self.csub(a2, a1, a3)
        self.cadd(a1, a1, a3)
        self.csub(a3, a0, a1)
        self.cadd(a0, a0, a1)
        self.cadd_si(a1, t, a2, sg)
        self.cadd_si(a2, t, a2, -sg)
        self.fpair(t)
        return [a0, a1, a3, a2]
    def dft8(self, x, sg, KR):
        a = list(x)
        b = [None] * 8
        tmp = self.pair()
        free = [tmp]
        for i in range(4):
            nr = free.pop()
            self.csub(nr, a[i], a[i + 4])
            self.cadd(a[i], a[i], a[i + 4])
            b[i] = a[i]; b[i + 4] = nr
            free.append(a[i + 4])
        c2 = free.pop()
        self.csub(c2, b[0], b[2]); self.cadd(b[0], b[0], b[2]); c0 = b[0]
        c3 = b[2]
        self.csub(c3, b[1], b[3]); self.cadd(b[1], b[1], b[3]); c1 = b[1]
        X4 = b[3]
        self.csub(X4, c0, c1); self.cadd(c0, c0, c1); X0 = c0
        X2 = c1
        self.cadd_si(X2, c2, c3, sg)
        X6 = c3
        self.cadd_si(X6, c2, c3, -sg)
        free.append(c2)
        d0 = free.pop()
        self.cadd_si(d0, b[4], b[6], sg)
        d2 = b[4]
        self.cadd_si(d2, b[4], b[6], -sg)
        p = b[6]
        self.cadd_si(p, b[5], b[5], sg)
        q = b[5]
        self.cadd_si(q, b[7], b[7], -sg)
        s = b[7]
        self.csub(s, p, q)
        u = p
        self.cadd(u, p, q)
        X1 = q
        self.kfma(X1, s, KR, d0)
        X5 = d0
        self.kfma(X5, s, KR, d0, neg=True)
        X3 = s
        self.kfma_i(X3, u, KR, d2, sg)
        X7 = u
        self.kfma_i(X7, u, KR, d2, -sg)
        self.fpair(d2)
        return [X0, X1, X2, X3, X4, X5, X6, X7]
    def dft5(self, x, sg, KC, KS):
        a0, a1, a2, a3, a4 = x
        t1 = self.pair(); t2 = self.pair()
        self.cadd(t1, a1, a4); self.cadd(t2, a2, a3)
        t3 = a1; self.csub(t3, a1, a4)
        t4 = a2; self.csub(t4, a2, a3)
        m1 = a4; self.kfma(m1, t1, KC, a0, sel=0); self.kfma(m1, t2, KC, m1, sel=1)
        m2 = a3; self.kfma(m2, t1, KC, a0, sel=1); self.kfma(m2, t2, KC, m2, sel=0)
        self.cadd(t1, t1, t2); self.cadd(a0, a0, t1); X0 = a0
        n1 = t1; self.kmul(n1, t3, KS, sel=0); self.kfma(n1, t4, KS, n1, sel=1)
        n2 = t2; self.kmul(n2, t3, KS, sel=1); self.kfma(n2, t4, KS, n2, sel=0, neg=True)
        X1 = t3; self.cadd_si(X1, m1, n1, sg)
        X4 = m1; self.cadd_si(X4, m1, n1, -sg)
        X2 = t4; self.cadd_si(X2, m2, n2, sg)
        X3 = m2; self.cadd_si(X3, m2, n2, -sg)
        self.fpair(t1); self.fpair(t2)
        return [X0, X1, X2, X3, X4]
    def dft10(self, x, sg, KC, KS):
        ev = []; od = []
        for n2 in range(5):
            r0 = x[(2 * n2) % 10]; r1 = x[(5 + 2 * n2) % 10]
            t = self.pair()
            self.csub(t, r0, r1); self.cadd(r0, r0, r1)
            self.fpair(r1)
            ev.append(r0); od.append(t)
        E = self.dft5(ev, sg, KC, KS)
        O = self.dft5(od, sg, KC, KS)
        out = [None] * 10
        for k in range(10):
            out[k] = (E if k % 2 == 0 else O)[k % 5]
        return out

class Sim:
    def __init__(self, nv=256):
        self.v = np.zeros(nv, np.float32)
    def setc(self, r, z): self.v[r] = np.float32(z.real); self.v[r + 1] = np.float32(z.imag)
    def getc(self, r): return complex(self.v[r], self.v[r + 1])
    def run(self, lines):
        for ln in lines:
            ln = ln.strip()
            if not ln or ln.startswith(";"): continue
            m = re.match(r"(v_pk_add_f32|v_pk_mul_f32|v_pk_fma_f32)\s+(.*)", ln)
            if not m: raise RuntimeError("sim: unsupported " + ln)
            op = m.group(1); rest = m.group(2)
            regs = [int(x) for x in re.findall(r"v\[(\d+):\d+\]", rest)]
            n = len(regs) - 1
            def mod(name, default):
                mm = re.search(name + r":\[([\d,]+)\]", rest)
                return [int(x) for x in mm.group(1).split(",")] if mm else default
            ops = mod("op_sel", [0] * n); oph = mod("op_sel_hi", [1] * n)
            nl = mod("neg_lo", [0] * n); nh = mod("neg_hi", [0] * n)
            d = regs[0]; src = regs[1:]
            lo = [np.float32(self.v[src[i] + ops[i]] * (-1 if nl[i] else 1)) for i in range(n)]
            hi = [np.float32(self.v[src[i] + oph[i]] * (-1 if nh[i] else 1)) for i in range(n)]
            def f(a):
                if op == "v_pk_add_f32": return np.float32(a[0] + a[1])
                if op == "v_pk_mul_f32": return np.float32(a[0] * a[1])
                return np.float32(np.float64(a[0]) * np.float64(a[1]) + np.float64(a[2]))
            rl, rh = f(lo), f(hi)
            self.v[d] = rl; self.v[d + 1] = rh

if __name__ == "__main__":
    rng = np.random.default_rng(1)
    for n, sg in [(4, -1), (4, 1), (8, -1), (8, 1), (5, -1), (5, 1), (10, -1), (10, 1)]:
        k = Kern("t")
        KR = k.pair(); KC = k.pair(); KS = k.pair()
        x = [k.pair() for _ in range(n)]
        z = rng.standard_normal(n) + 1j * rng.standard_normal(n)
        sim = Sim()
        sim.v[KR] = np.sqrt(0.5); sim.v[KR + 1] = 123.0
        sim.v[KC] = np.cos(2 * np.pi / 5); sim.v[KC + 1] = np.cos(4 * np.pi / 5)
        sim.v[KS] = np.sin(2 * np.pi / 5); sim.v[KS + 1] = np.sin(4 * np.pi / 5)
        for i in range(n): sim.setc(x[i], z[i])
        nfree0 = len(k.v.free)
        if n == 4: X = k.dft4(x, sg)
        elif n == 8: X = k.dft8(x, sg, KR)
        elif n == 5: X = k.dft5(x, sg, KC, KS)
        else: X = k.dft10(x, sg, KC, KS)
        sim.run(k.L)
        ref = np.array([sum(z[j] * np.exp(sg * 2j * np.pi * j * kk / n) for j in range(n)) for kk in range(n)])
        got = np.array([sim.getc(r) for r in X])
        print(n, sg, "err", np.abs(got - ref).max(), "ninstr", len(k.L), "regs leaked", nfree0 - len(k.v.free), "distinct", len(set(X)))
```

```python
from asmlib import *
KNAME = "sequential_preLN__spectral_gfnet__mixer_channel_mlp__prompt"
WS_X1T = 0x0
WS_X4T = 0x600000
WS_WTP = 0xC00000
WS_H   = 0x1000000
WS_YN  = 0x1400000
WS_H1  = 0x1800000
WS_W1T = 0x2000000
WS_W2T = 0x2400000
XT_BYTES = 321 * 16384
WTP_BYTES = 321 * 8192
KA_X, KA_WR, KA_WI, KA_BX, KA_W1, KA_B1, KA_W2, KA_B2, KA_OUT, KA_DBG, KA_WS = [8 * i for i in range(11)]

def f32bits(x):
    return int(np.array([x], np.float32).view(np.uint32)[0])
def hexf(x):
    return f"0x{f32bits(x):08x}"

class GK(Kern):
    def load_ptr(self, sreg, ka_off):
        self.I(f"s_load_dwordx2 s[{sreg}:{sreg+1}], s[0:1], {ka_off}")
    def make_srd(self, d, base_lo, offset, nbytes):
        if offset:
            self.I(f"s_add_u32 s{d}, s{base_lo}, 0x{offset:x}")
            self.I(f"s_addc_u32 s{d+1}, s{base_lo+1}, 0")
        else:
            self.I(f"s_mov_b32 s{d}, s{base_lo}")
            self.I(f"s_mov_b32 s{d+1}, s{base_lo+1}")
        self.I(f"s_mov_b32 s{d+2}, 0x{nbytes:x}")
        self.I(f"s_mov_b32 s{d+3}, 0x00020000")
    def gen_tw(self, idx, N, npow, sign=-1):
        t = self.v.alloc(1)
        w = [None] + [self.pair() for _ in range(npow)]
        self.I(f"v_cvt_f32_u32 v{t}, v{idx}")
        self.I(f"v_mul_f32 v{t}, {hexf(sign / N)}, v{t}")
        self.I(f"v_cos_f32 v{w[1]}, v{t}")
        self.I(f"v_sin_f32 v{w[1]+1}, v{t}")
        self.nop(1)
        self.v.release(t)
        rec = {2: (1, 1), 3: (2, 1), 4: (2, 2), 5: (4, 1), 6: (3, 3), 7: (4, 3), 8: (4, 4), 9: (8, 1)}
        for p in range(2, npow + 1):
            a, b = rec[p]
            self.cmul(w[p], w[a], w[b])
        return w
    def emit_kernel(self, vgprs=None, sgprs=None, lds_static=0):
        pass

def kernel_text(k, label, accum=None):
    nv = max(k.v.high, 1)
    nv = (nv + 7) // 8 * 8
    acc = accum if accum is not None else ((nv + 3) // 4 * 4)
    tot = nv if accum is None else accum + k.agprs
    body = k.text()
    hdr = (f".globl {label}\n.p2align 8\n.type {label},@function\n{label}:\n")
    desc = (f".amdhsa_kernel {label}\n"
            f"  .amdhsa_next_free_vgpr {tot}\n"
            f"  .amdhsa_next_free_sgpr 102\n"
            f"  .amdhsa_accum_offset {acc}\n"
            f"  .amdhsa_group_segment_fixed_size 0\n"
            f"  .amdhsa_kernarg_size 88\n"
            f"  .amdhsa_user_sgpr_count 2\n"
            f"  .amdhsa_user_sgpr_kernarg_segment_ptr 1\n"
            f"  .amdhsa_system_sgpr_workgroup_id_x 1\n"
            f".end_amdhsa_kernel\n")
    return hdr + body, desc

HEADER = """; Kernarg layout for this problem (88 bytes, ptrs only, base s[0:1]):
"""

def assemble_file(kernels, path):
    s = HEADER
    for kd in kernels:
        g = kd["grid"]; b = kd["block"]
        s += f"; @launch kernel={kd['label']} grid=({g},1,1) block=({b},1,1) lds={kd['lds']}\n"
    s += '.amdgcn_target "amdgcn-amd-amdhsa--gfx950"\n.text\n'
    descs = []
    seen = set()
    for kd in kernels:
        if kd["label"] in seen: continue
        seen.add(kd["label"])
        t, d = kernel_text(kd["k"], kd["label"], kd.get("accum"))
        s += t; descs.append(d)
    s += '.section .rodata,"a"\n'
    for d in descs:
        s += ".p2align 6\n" + d
    open(path, "w").write(s)
    return s
```

```python
from common import *

class DK(GK):
    def consts(self):
        k = self
        self.KR = k.pair(); self.KC = k.pair(); self.KS = k.pair()
        k.I(f"v_mov_b32 v{self.KR}, {hexf(np.sqrt(0.5))}")
        k.I(f"v_mov_b32 v{self.KR+1}, {hexf(np.sqrt(0.5))}")
        k.I(f"v_mov_b32 v{self.KC}, {hexf(np.cos(2*np.pi/5))}")
        k.I(f"v_mov_b32 v{self.KC+1}, {hexf(np.cos(4*np.pi/5))}")
        k.I(f"v_mov_b32 v{self.KS}, {hexf(np.sin(2*np.pi/5))}")
        k.I(f"v_mov_b32 v{self.KS+1}, {hexf(np.sin(4*np.pi/5))}")
    def bf16r_pair(self, d, a, tmp):
        self.I(f"v_cvt_pk_bf16_f32 v{tmp}, v{a}, v{a+1}")
        self.I(f"v_lshlrev_b32 v{d}, 16, v{tmp}")
        self.I(f"v_and_b32 v{d+1}, 0xffff0000, v{tmp}")
    def wave_sum_pair(self, s, sA):
        k = self
        for ctl in ["quad_perm:[1,0,3,2]", "quad_perm:[2,3,0,1]", "row_half_mirror", "row_mirror"]:
            k.nop(2)
            k.I(f"v_add_f32_dpp v{s}, v{s}, v{s} {ctl} row_mask:0xf bank_mask:0xf")
            k.I(f"v_add_f32_dpp v{s+1}, v{s+1}, v{s+1} {ctl} row_mask:0xf bank_mask:0xf")
        k.nop(2)
        for h in range(2):
            for r in range(4):
                k.I(f"v_readlane_b32 s{sA+h*4+r}, v{s+h}, {r*16}")
        k.nop(2)
        for h in range(2):
            k.I(f"v_mov_b32 v{s+h}, s{sA+h*4}")
            for r in range(1, 4):
                k.I(f"v_add_f32 v{s+h}, s{sA+h*4+r}, v{s+h}")
    def layernorm(self, z, sA):
        k = self
        s = k.pair(); acc = k.pair(); d = k.pair(); tmp = k.v.alloc(1)
        KI = k.pair()
        k.I(f"v_mov_b32 v{KI}, {hexf(1.0/640)}"); k.I(f"v_mov_b32 v{KI+1}, {hexf(1.0/640)}")
        k.cadd(s, z[0], z[1])
        for j in range(2, 10): k.cadd(s, s, z[j])
        k.wave_sum_pair(s, sA)
        k.kmul(s, s, KI)
        for j in range(10):
            k.csub(d, z[j], s)
            if j == 0:
                k.I(f"v_pk_mul_f32 {k.P(acc)}, {k.P(d)}, {k.P(d)}")
            else:
                k.I(f"v_pk_fma_f32 {k.P(acc)}, {k.P(d)}, {k.P(d)}, {k.P(acc)}")
        k.wave_sum_pair(acc, sA)
        k.kmul(acc, acc, KI)
        k.bf16r_pair(s, s, tmp)
        k.bf16r_pair(acc, acc, tmp)
        k.I(f"v_add_f32 v{acc}, {hexf(1e-5)}, v{acc}"); k.I(f"v_add_f32 v{acc+1}, {hexf(1e-5)}, v{acc+1}")
        k.bf16r_pair(acc, acc, tmp)
        k.I(f"v_sqrt_f32 v{acc}, v{acc}"); k.I(f"v_sqrt_f32 v{acc+1}, v{acc+1}")
        k.nop(1)
        k.bf16r_pair(acc, acc, tmp)
        rc = KI
        k.I(f"v_rcp_f32 v{rc}, v{acc}"); k.I(f"v_rcp_f32 v{rc+1}, v{acc+1}")
        k.nop(1)
        q = k.pair(); e = k.pair()
        for j in range(10):
            k.csub(d, z[j], s)
            k.bf16r_pair(d, d, tmp)
            k.I(f"v_pk_mul_f32 {k.P(q)}, {k.P(d)}, {k.P(rc)}")
            k.I(f"v_pk_fma_f32 {k.P(e)}, {k.P(q)}, {k.P(acc)}, {k.P(d)} neg_lo:[1,0,0] neg_hi:[1,0,0]")
            k.I(f"v_pk_fma_f32 {k.P(q)}, {k.P(e)}, {k.P(rc)}, {k.P(q)}")
            k.bf16r_pair(z[j], q, tmp)
        for p in (s, acc, d, KI, q, e): k.fpair(p)
        k.v.release(tmp)
```

```python
from common import *

def build_gemm(name, M, N, K, TM, TN, WM, WN, mode):
    k = GK(name, vlo=1)
    END = name + "_end"
    NTN = (N + TN - 1) // TN; NTM = M // TM
    nwg = NTN * NTM
    NT = TN // (WN * 32); MT = TM // (WM * 32)
    RS = 144
    STAGE = (TN + TM) * RS
    nLA, nLB = TM // 32, TN // 32
    k.load_ptr(4, KA_WS)
    k.load_ptr(6, KA_B1 if mode == 1 else KA_B2)
    if mode == 2: k.load_ptr(36, KA_OUT)
    k.I(f"s_cmp_ge_u32 s2, {nwg}")
    k.I(f"s_cbranch_scc1 {END}")
    sA, sB, sBias, sC, sR = 8, 12, 16, 20, 24
    vw = k.v.alloc(1)
    k.I(f"v_lshrrev_b32 v{vw}, 6, v0")
    k.nop(1)
    k.I(f"v_readfirstlane_b32 s3, v{vw}")
    k.I("s_waitcnt lgkmcnt(0)")
    if mode == 1:
        k.make_srd(sA, 4, WS_YN, M * K * 2); k.make_srd(sB, 4, WS_W1T, N * K * 2)
        k.make_srd(sC, 4, WS_H1, M * N * 2)
    else:
        k.make_srd(sA, 4, WS_H1, M * K * 2); k.make_srd(sB, 4, WS_W2T, N * K * 2)
        k.make_srd(sC, 36, 0, M * N * 2); k.make_srd(sR, 4, WS_H, M * N * 2)
    k.make_srd(sBias, 6, 0, N * 2)
    k.I(f"s_mov_b32 s28, {NTN}")
    magic = (1 << 32) // NTN + 1
    k.I(f"s_mul_hi_u32 s29, s2, 0x{magic:x}")
    k.I("s_mul_i32 s30, s29, s28"); k.I("s_sub_u32 s30, s2, s30")
    k.I(f"s_mul_i32 s31, s29, {TM}")
    k.I(f"s_mul_i32 s32, s30, {TN}")
    vrow = k.v.alloc(1); vch = k.v.alloc(1)
    k.I(f"v_lshrrev_b32 v{vrow}, 3, v0"); k.I(f"v_and_b32 v{vch}, 7, v0")
    vgA = k.v.alloc(1); vgB = k.v.alloc(1)
    k.I(f"v_add_u32 v{vgA}, s31, v{vrow}"); k.I(f"v_mul_u32_u24 v{vgA}, {K*2}, v{vgA}")
    k.I(f"v_lshl_add_u32 v{vgA}, v{vch}, 4, v{vgA}")
    k.I(f"v_add_u32 v{vgB}, s32, v{vrow}"); k.I(f"v_mul_u32_u24 v{vgB}, {K*2}, v{vgB}")
    k.I(f"v_lshl_add_u32 v{vgB}, v{vch}, 4, v{vgB}")
    vlw = k.v.alloc(1)
    k.I(f"v_mul_u32_u24 v{vlw}, {RS}, v{vrow}"); k.I(f"v_lshl_add_u32 v{vlw}, v{vch}, 4, v{vlw}")
    k.v.release(vrow); k.v.release(vch)
    nL = nLA + nLB
    for i in range(nLA): k.I(f"s_mov_b32 s{40+i}, {i*32*K*2}")
    for i in range(nLB): k.I(f"s_mov_b32 s{40+nLA+i}, {i*32*K*2}")
    lane = k.v.alloc(1); k.I(f"v_and_b32 v{lane}, 63, v0")
    l31 = k.v.alloc(1); k.I(f"v_and_b32 v{l31}, 31, v0")
    lhi = k.v.alloc(1); k.I(f"v_bfe_u32 v{lhi}, v0, 5, 1")
    k.I(f"s_lshr_b32 s33, s3, {int(math.log2(WM))}"); k.I(f"s_and_b32 s34, s3, {WM-1}")
    vfa = k.v.alloc(1); vfb = k.v.alloc(1)
    k.I(f"s_mul_i32 s35, s33, {NT*32*RS}")
    k.I(f"v_mul_u32_u24 v{vfa}, {RS}, v{l31}"); k.I(f"v_lshl_add_u32 v{vfa}, v{lhi}, 4, v{vfa}")
    k.I(f"v_add_u32 v{vfb}, 0, v{vfa}")
    k.I(f"v_add_u32 v{vfa}, s35, v{vfa}")
    k.I(f"s_mul_i32 s35, s34, {MT*32*RS}"); k.I(f"s_add_u32 s35, s35, {TN*RS}")
    k.I(f"v_add_u32 v{vfb}, s35, v{vfb}")
    vbn = k.v.alloc(1)
    k.I(f"s_mul_i32 s35, s33, {NT*32}"); k.I("s_add_u32 s35, s35, s32")
    k.I(f"v_lshl_add_u32 v{vbn}, v{lhi}, 2, s35")
    k.I(f"v_lshlrev_b32 v{vbn}, 1, v{vbn}")
    bias = [[k.pair() for g in range(4)] for nt in range(NT)]
    for nt in range(NT):
        for g in range(4):
            k.I(f"buffer_load_dwordx2 {k.P(bias[nt][g])}, v{vbn}, s[{sBias}:{sBias+3}], 0 offen offset:{(nt*32+8*g)*2}")
    acc = [[k.v.alloc(16, 4) for mt in range(MT)] for nt in range(NT)]
    for nt in range(NT):
        for mt in range(MT):
            for r in range(16): k.I(f"v_mov_b32 v{acc[nt][mt]+r}, 0")
    gl = [k.quad() for _ in range(nL)]
    fa = [k.quad() for _ in range(NT)]; fb = [k.quad() for _ in range(MT)]
    def gload():
        for i in range(nLA):
            k.I(f"buffer_load_dwordx4 v[{gl[i]}:{gl[i]+3}], v{vgA}, s[{sA}:{sA+3}], s{40+i} offen")
        for i in range(nLB):
            k.I(f"buffer_load_dwordx4 v[{gl[nLA+i]}:{gl[nLA+i]+3}], v{vgB}, s[{sB}:{sB+3}], s{40+nLA+i} offen")
        for i in range(nL): k.I(f"s_add_u32 s{40+i}, s{40+i}, 128")
    vlw1 = k.v.alloc(1); vfa1 = k.v.alloc(1); vfb1 = k.v.alloc(1)
    k.I(f"v_add_u32 v{vlw1}, {STAGE}, v{vlw}"); k.I(f"v_add_u32 v{vfa1}, {STAGE}, v{vfa}"); k.I(f"v_add_u32 v{vfb1}, {STAGE}, v{vfb}")
    def lwrite(buf):
        base = 0; vl = (vlw, vlw1)[buf]
        for i in range(nLB):
            k.I(f"ds_write_b128 v{vl}, v[{gl[nLA+i]}:{gl[nLA+i]+3}] offset:{base + i*32*RS}")
        for i in range(nLA):
            k.I(f"ds_write_b128 v{vl}, v[{gl[i]}:{gl[i]+3}] offset:{base + TN*RS + i*32*RS}")
    def compute(buf):
        base = 0; va = (vfa, vfa1)[buf]; vb = (vfb, vfb1)[buf]
        for ks in range(4):
            for nt in range(NT):
                k.I(f"ds_read_b128 v[{fa[nt]}:{fa[nt]+3}], v{va} offset:{base + nt*32*RS + ks*32}")
            for mt in range(MT):
                k.I(f"ds_read_b128 v[{fb[mt]}:{fb[mt]+3}], v{vb} offset:{base + mt*32*RS + ks*32}")
            k.I("s_waitcnt lgkmcnt(0)")
            for nt in range(NT):
                for mt in range(MT):
                    a = acc[nt][mt]
                    k.I(f"v_mfma_f32_32x32x16_bf16 v[{a}:{a+15}], v[{fa[nt]}:{fa[nt]+3}], v[{fb[mt]}:{fb[mt]+3}], v[{a}:{a+15}]")
    NIT = K // 64
    gload()
    k.I("s_waitcnt vmcnt(0)")
    lwrite(0)
    k.I("s_waitcnt lgkmcnt(0)"); k.I("s_barrier")
    assert NIT % 2 == 0 or True
    k.I(f"s_mov_b32 s50, {NIT}")
    LOOP = name + "_loop"; DONE = name + "_done"
    k.lab(LOOP)
    for par in range(2):
        skip = k.newlabel("skip")
        k.I("s_cmp_le_u32 s50, 1")
        k.I(f"s_cbranch_scc1 {skip}")
        gload()
        k.lab(skip)
        compute(par)
        k.I("s_sub_u32 s50, s50, 1")
        k.I("s_cmp_eq_u32 s50, 0")
        k.I(f"s_cbranch_scc1 {DONE}")
        k.I("s_waitcnt vmcnt(0)")
        lwrite(par ^ 1)
        k.I("s_waitcnt lgkmcnt(0)"); k.I("s_barrier")
    k.I(f"s_branch {LOOP}")
    k.lab(DONE)
    if N % TN:
        k.I(f"s_mul_i32 s35, s33, {NT*32}"); k.I("s_add_u32 s35, s35, s32")
        k.I(f"s_cmp_ge_u32 s35, {N}")
        k.I(f"s_cbranch_scc1 {END}")
    k.I("s_waitcnt vmcnt(0)")
    k.nop(16)
    vo = k.v.alloc(1)
    k.I(f"s_mul_i32 s35, s34, {MT*32}"); k.I("s_add_u32 s35, s35, s31")
    k.I(f"v_add_u32 v{vo}, s35, v{l31}"); k.I(f"v_mul_u32_u24 v{vo}, {N*2}, v{vo}")
    k.I(f"v_add_u32 v{vo}, v{vo}, v{vbn}")
    tb = k.v.alloc(8, 2); t = [tb + i for i in range(8)]
    pk = k.pair(); bq = k.quad()
    c1 = -2 * math.log2(math.e) * math.sqrt(2 / math.pi); c2 = c1 * 0.044715
    res = None
    for nt in range(NT):
        for g in range(4):
            b = bias[nt][g]
            k.I(f"v_lshlrev_b32 v{bq}, 16, v{b}"); k.I(f"v_and_b32 v{bq+1}, 0xffff0000, v{b}")
            k.I(f"v_lshlrev_b32 v{bq+2}, 16, v{b+1}"); k.I(f"v_and_b32 v{bq+3}, 0xffff0000, v{b+1}")
            for mt in range(MT):
                a = acc[nt][mt] + 4 * g
                off = (mt * 32 * N + nt * 32 + 8 * g) * 2
                k.I(f"s_mov_b32 s51, {off}")
                if mode == 2:
                    res = [t[4], t[5]]
                    k.I(f"buffer_load_dwordx2 v[{t[4]}:{t[5]}], v{vo}, s[{sR}:{sR+3}], s51 offen")
                k.I(f"v_cvt_pk_bf16_f32 v{pk}, v{a}, v{a+1}"); k.I(f"v_cvt_pk_bf16_f32 v{pk+1}, v{a+2}, v{a+3}")
                k.I(f"v_lshlrev_b32 v{t[0]}, 16, v{pk}"); k.I(f"v_and_b32 v{t[1]}, 0xffff0000, v{pk}")
                k.I(f"v_lshlrev_b32 v{t[2]}, 16, v{pk+1}"); k.I(f"v_and_b32 v{t[3]}, 0xffff0000, v{pk+1}")
                for e in range(4): k.I(f"v_add_f32 v{t[e]}, v{t[e]}, v{bq+e}")
                k.I(f"v_cvt_pk_bf16_f32 v{pk}, v{t[0]}, v{t[1]}"); k.I(f"v_cvt_pk_bf16_f32 v{pk+1}, v{t[2]}, v{t[3]}")
                k.I(f"v_lshlrev_b32 v{t[0]}, 16, v{pk}"); k.I(f"v_and_b32 v{t[1]}, 0xffff0000, v{pk}")
                k.I(f"v_lshlrev_b32 v{t[2]}, 16, v{pk+1}"); k.I(f"v_and_b32 v{t[3]}, 0xffff0000, v{pk+1}")
                if mode == 1:
                    for e in range(4):
                        x = t[e]; y = t[4 + e]
                        k.I(f"v_mul_f32 v{y}, v{x}, v{x}")
                        k.I(f"v_mov_b32 v{pk}, {hexf(c1)}")
                        k.I(f"v_fmac_f32 v{pk}, {hexf(c2)}, v{y}")
                        k.I(f"v_mul_f32 v{y}, v{x}, v{pk}")
                        k.I(f"v_exp_f32 v{y}, v{y}")
                        k.nop(1)
                        k.I(f"v_add_f32 v{y}, 1.0, v{y}")
                        k.I(f"v_rcp_f32 v{y}, v{y}")
                        k.nop(1)
                        k.I(f"v_mul_f32 v{x}, v{x}, v{y}")
                else:
                    k.I("s_waitcnt vmcnt(0)")
                    k.I(f"v_lshlrev_b32 v{t[6]}, 16, v{t[4]}"); k.I(f"v_and_b32 v{t[7]}, 0xffff0000, v{t[4]}")
                    k.I(f"v_add_f32 v{t[0]}, v{t[0]}, v{t[6]}"); k.I(f"v_add_f32 v{t[1]}, v{t[1]}, v{t[7]}")
                    k.I(f"v_lshlrev_b32 v{t[6]}, 16, v{t[5]}"); k.I(f"v_and_b32 v{t[7]}, 0xffff0000, v{t[5]}")
                    k.I(f"v_add_f32 v{t[2]}, v{t[2]}, v{t[6]}"); k.I(f"v_add_f32 v{t[3]}, v{t[3]}, v{t[7]}")
                k.I(f"v_cvt_pk_bf16_f32 v{pk}, v{t[0]}, v{t[1]}"); k.I(f"v_cvt_pk_bf16_f32 v{pk+1}, v{t[2]}, v{t[3]}")
                k.I(f"buffer_store_dwordx2 {k.P(pk)}, v{vo}, s[{sC}:{sC+3}], s51 offen")
                k.nop(2)
    k.lab(END)
    k.I("s_endpgm")
    return dict(label=name + "_kernel", k=k, grid=nwg, block=256, lds=2 * STAGE)

def build_k4(): return build_gemm("k4", 2048, 1728, 640, 128, 128, 2, 2, 1)
def build_k5(): return build_gemm("k5", 2048, 640, 1728, 128, 64, 2, 2, 2)

if __name__ == "__main__":
    for f in (build_k4, build_k5):
        kd = f(); print(kd["label"], "vgprs", kd["k"].v.high, "instr", len(kd["k"].L), "grid", kd["grid"], "lds", kd["lds"])
    assemble_file([build_k4(), build_k5()], "k45.s")
```

```python
from fftd import *

NFFT_WG = 256
NTR_WG = 192
def build_k1():
    k = DK("k1", vlo=1)
    END = "k1_end"; TR = "k1_tr"
    k.load_ptr(4, KA_WS)
    k.load_ptr(6, KA_X)
    k.I(f"s_cmp_ge_u32 s2, {NFFT_WG + NTR_WG}")
    k.I(f"s_cbranch_scc1 {END}")
    vw = k.v.alloc(1)
    k.I(f"v_lshrrev_b32 v{vw}, 6, v0")
    k.I("v_and_b32 v0, 63, v0")
    k.nop(1)
    k.I(f"v_readfirstlane_b32 s3, v{vw}")
    k.v.release(vw)
    k.I(f"s_cmp_ge_u32 s2, {NFFT_WG}")
    k.I(f"s_cbranch_scc1 {TR}")
    sX, sO = 8, 12
    k.I("s_waitcnt lgkmcnt(0)")
    k.make_srd(sX, 6, 0, 2048 * 640 * 2)
    k.make_srd(sO, 4, WS_X1T, XT_BYTES)
    k.I("s_lshl_b32 s16, s2, 2"); k.I("s_add_u32 s16, s16, s3")
    k.I("s_mul_i32 s17, s16, 2560")
    k.I("s_mul_i32 s18, s3, 5760")
    k.I("s_lshl_b32 s19, s16, 4")
    z = [k.pair() for _ in range(10)]
    v2 = k.v.alloc(1); k.I(f"v_lshlrev_b32 v{v2}, 1, v0")
    for j in range(10):
        k.I(f"v_mov_b32 v{z[j]}, 0"); k.I(f"v_mov_b32 v{z[j]+1}, 0")
    for j in range(10):
        k.I(f"buffer_load_short_d16_hi v{z[j]}, v{v2}, s[{sX}:{sX+3}], s17 offen offset:{j*128}")
        k.I(f"buffer_load_short_d16_hi v{z[j]+1}, v{v2}, s[{sX}:{sX+3}], s17 offen offset:{1280+j*128}")
    k.v.release(v2)
    k.consts()
    tw1 = k.gen_tw(0, 640, 9)
    t1 = k.v.alloc(1)
    k.I(f"v_and_b32 v{t1}, 7, v0")
    tw2 = k.gen_tw(t1, 64, 7)
    hi = k.v.alloc(1)
    k.I(f"v_lshrrev_b32 v{hi}, 3, v0")
    a_t = k.v.alloc(1); k.I(f"v_lshlrev_b32 v{a_t}, 3, v0"); k.I(f"v_add_u32 v{a_t}, s18, v{a_t}")
    a_p2 = k.v.alloc(1)
    k.I(f"v_mul_u32_u24 v{a_p2}, 72, v{hi}"); k.I(f"v_add_u32 v{a_p2}, v{a_p2}, v{t1}")
    k.I(f"v_lshlrev_b32 v{a_p2}, 3, v{a_p2}"); k.I(f"v_add_u32 v{a_p2}, s18, v{a_p2}")
    a_w2 = k.v.alloc(1)
    k.I(f"v_mul_u32_u24 v{a_w2}, 72, v{hi}"); k.I(f"v_mad_u32_u24 v{a_w2}, v{t1}, 9, v{a_w2}")
    k.I(f"v_lshlrev_b32 v{a_w2}, 3, v{a_w2}"); k.I(f"v_add_u32 v{a_w2}, s18, v{a_w2}")
    a_z = k.v.alloc(1)
    k.I(f"v_mad_u32_u24 v{a_z}, v{t1}, 10, v{hi}")
    k.I(f"v_lshlrev_b32 v{a_z}, 3, v{a_z}"); k.I(f"v_add_u32 v{a_z}, s18, v{a_z}")
    a_m = k.v.alloc(1)
    k.I(f"v_sub_u32 v{a_m}, 320, v0"); k.I(f"v_lshlrev_b32 v{a_m}, 3, v{a_m}"); k.I(f"v_add_u32 v{a_m}, s18, v{a_m}")
    vst = k.v.alloc(1)
    k.I(f"v_lshlrev_b32 v{vst}, 14, v0")
    k.v.release(hi); k.v.release(t1)
    def wr(addr, off, r): k.I(f"ds_write_b64 v{addr}, {k.P(r)} offset:{off}")
    def rd(r, addr, off): k.I(f"ds_read_b64 {k.P(r)}, v{addr} offset:{off}")
    def wait(): k.I("s_waitcnt lgkmcnt(0)")
    def ex(m): k.I(f"s_mov_b64 exec, {m}")
    k.I("s_waitcnt vmcnt(0)")
    k.layernorm(z, 20)
    y = k.dft10(z, -1, k.KC, k.KS)
    for r in range(1, 10): k.cmul(y[r], y[r], tw1[r])
    for r in range(10): wr(a_t, r * 576, y[r])
    for w in tw1[1:]: k.fpair(w)
    A = y[:8]
    for j2 in range(8): rd(A[j2], a_p2, j2 * 64)
    Bq = [y[8], y[9]] + [k.pair() for _ in range(6)]
    ex("0xffff")
    for j2 in range(8): rd(Bq[j2], a_p2, 4608 + j2 * 64)
    ex("-1")
    wait()
    A = k.dft8(A, -1, k.KR)
    for r2 in range(1, 8): k.cmul(A[r2], A[r2], tw2[r2])
    Bq = k.dft8(Bq, -1, k.KR)
    for r2 in range(1, 8): k.cmul(Bq[r2], Bq[r2], tw2[r2])
    for r2 in range(8): wr(a_w2, r2 * 8, A[r2])
    ex("0xffff")
    for r2 in range(8): wr(a_w2, 4608 + r2 * 8, Bq[r2])
    ex("-1")
    for tp in range(8): rd(A[tp], a_p2, tp * 72)
    ex("0xffff")
    for tp in range(8): rd(Bq[tp], a_p2, 4608 + tp * 72)
    ex("-1")
    wait()
    A = k.dft8(A, -1, k.KR)
    Bq = k.dft8(Bq, -1, k.KR)
    for kk in range(8): wr(a_z, kk * 640, A[kk])
    ex("0xffff")
    for kk in range(8): wr(a_z, kk * 640 + 64, Bq[kk])
    ex("1")
    wr(a_z, 5120, A[0])
    ex("-1")
    for p in A + Bq: k.fpair(p)
    for w in tw2[1:]: k.fpair(w)
    for i in range(6):
        zk = k.pair(); zm = k.pair(); q = k.quad()
        if i == 5: ex("1")
        rd(zk, a_t, i * 512)
        rd(zm, a_m, (320 - 64 * i) * 8)
        wait()
        k.I(f"v_pk_add_f32 {k.P(q)}, {k.P(zk)}, {k.P(zm)} neg_hi:[0,1]")
        k.I(f"v_pk_add_f32 {k.P(q+2)}, {k.P(zk)}, {k.P(zm)} op_sel:[1,1] op_sel_hi:[0,0] neg_hi:[1,0]")
        k.I(f"s_add_u32 s20, s19, {i * 64 * 16384}")
        k.I(f"buffer_store_dwordx4 v[{q}:{q+3}], v{vst}, s[{sO}:{sO+3}], s20 offen")
        k.fpair(zk); k.fpair(zm); k.v.release(q, 4)
    k.I("s_endpgm")
    k.lab(TR)
    k.load_ptr(8, KA_WR); k.load_ptr(10, KA_WI)
    k.I(f"s_sub_u32 s16, s2, {NFFT_WG}"); k.I("s_lshl_b32 s16, s16, 2"); k.I("s_add_u32 s16, s16, s3")
    k.I("s_and_b32 s17, s16, 127")
    k.I("s_lshr_b32 s18, s16, 7")
    k.I("s_waitcnt lgkmcnt(0)")
    sR, sI, sT = 12, 24, 28
    k.make_srd(sR, 8, 0, 2048 * 642)
    k.make_srd(sI, 10, 0, 2048 * 642)
    k.make_srd(sT, 4, WS_WTP, WTP_BYTES)
    k.I("s_lshr_b32 s19, s17, 4")
    k.I("s_bfe_u32 s20, s17, 0x30001")
    k.I("s_lshl_b32 s20, s20, 3"); k.I("s_add_u32 s19, s19, s20")
    k.I("s_and_b32 s20, s17, 1"); k.I("s_lshl_b32 s20, s20, 8"); k.I("s_add_u32 s19, s19, s20")
    k.I("s_mul_i32 s19, s19, 642")
    k.I("s_lshl_b32 s21, s17, 6")
    vkd = k.v.alloc(1)
    k.I("s_lshl_b32 s18, s18, 6")
    k.I(f"v_add_u32 v{vkd}, s18, v0")
    k.I(f"v_cmp_gt_u32 vcc, 321, v{vkd}")
    k.I("s_and_saveexec_b64 s[22:23], vcc")
    k.I(f"s_cbranch_execz {END}")
    vo2 = k.v.alloc(1); k.I(f"v_lshlrev_b32 v{vo2}, 1, v{vkd}")
    vo13 = k.v.alloc(1); k.I(f"v_lshlrev_b32 v{vo13}, 13, v{vkd}")
    rr = [k.quad() for _ in range(4)]; ri = [k.quad() for _ in range(4)]
    for j in range(16):
        c = (128 * (j >> 3) + 64 * ((j >> 2) & 1) + 512 * (j & 3)) * 642
        k.I(f"s_add_u32 s{32+j}, s19, {c}")
        k.I(f"buffer_load_ushort v{rr[j//4]+j%4}, v{vo2}, s[{sR}:{sR+3}], s{32+j} offen")
        k.I(f"buffer_load_ushort v{ri[j//4]+j%4}, v{vo2}, s[{sI}:{sI+3}], s{32+j} offen")
    k.I("s_waitcnt vmcnt(0)")
    for j in range(16):
        k.I(f"v_lshl_or_b32 v{rr[j//4]+j%4}, v{ri[j//4]+j%4}, 16, v{rr[j//4]+j%4}")
    for m in range(4):
        k.I(f"buffer_store_dwordx4 v[{rr[m]}:{rr[m]+3}], v{vo13}, s[{sT}:{sT+3}], s21 offen offset:{16*m}")
    k.lab(END)
    k.I("s_endpgm")
    return dict(label="k1_kernel", k=k, grid=NFFT_WG + NTR_WG, block=256, lds=4 * 5760)

if __name__ == "__main__":
    kd = build_k1()
    assemble_file([kd], "k1_only.s")
    print("vgprs", kd["k"].v.high, "instr", len(kd["k"].L))
```

```python
from common import *

def build_k2(nwg=321):
    k = GK("k2", vlo=1)
    END = "k2_end"
    k.load_ptr(4, KA_WS)
    k.I(f"s_cmp_ge_u32 s2, {nwg}")
    k.I(f"s_cbranch_scc1 {END}")
    sX, sY, sW = 8, 12, 16
    k.I("s_waitcnt lgkmcnt(0)")
    k.make_srd(sX, 4, WS_X1T, XT_BYTES)
    k.make_srd(sY, 4, WS_X4T, XT_BYTES)
    k.make_srd(sW, 4, WS_WTP, WTP_BYTES)
    k.I("s_lshl_b32 s20, s2, 14")
    for n1 in range(1, 8):
        k.I(f"s_add_u32 s{20+n1}, s20, {n1*2048}")
    k.I("s_lshl_b32 s28, s2, 13")
    voff = k.v.alloc(1); k.I(f"v_lshlrev_b32 v{voff}, 3, v0")
    vw = k.v.alloc(1); k.I(f"v_lshlrev_b32 v{vw}, 5, v0")
    x = [k.pair() for _ in range(8)]
    for n1 in range(8):
        k.I(f"buffer_load_dwordx2 {k.P(x[n1])}, v{voff}, s[{sX}:{sX+3}], s{20+n1} offen")
    wq = [k.quad(), k.quad()]
    k.I(f"buffer_load_dwordx4 v[{wq[0]}:{wq[0]+3}], v{vw}, s[{sW}:{sW+3}], s28 offen")
    k.I(f"buffer_load_dwordx4 v[{wq[1]}:{wq[1]+3}], v{vw}, s[{sW}:{sW+3}], s28 offen offset:16")
    KR = k.pair()
    k.I(f"v_mov_b32 v{KR}, {hexf(np.sqrt(0.5))}")
    k.I(f"v_mov_b32 v{KR+1}, {hexf(np.sqrt(0.5))}")
    t1 = k.v.alloc(1)
    tw1 = k.gen_tw(0, 2048, 7)
    k.I(f"v_and_b32 v{t1}, 31, v0")
    tw2 = k.gen_tw(t1, 256, 7)
    k.I(f"v_and_b32 v{t1}, 3, v0")
    tw3 = k.gen_tw(t1, 32, 7)
    B1 = 18432
    a_t = voff
    a_r1 = k.v.alloc(1)
    k.I(f"v_lshrrev_b32 v{a_r1}, 5, v0")
    k.I(f"v_lshlrev_b32 v{a_r1}, 8, v{a_r1}")
    k.I(f"v_and_b32 v{t1}, 31, v0")
    k.I(f"v_add_u32 v{a_r1}, v{a_r1}, v{t1}")
    k.I(f"v_lshlrev_b32 v{a_r1}, 3, v{a_r1}")
    a_w2 = k.v.alloc(1)
    k.I(f"v_lshrrev_b32 v{a_w2}, 5, v0")
    k.I(f"v_mul_u32_u24 v{a_w2}, 288, v{a_w2}")
    k.I(f"v_add_u32 v{a_w2}, v{a_w2}, v{t1}")
    k.I(f"v_lshlrev_b32 v{a_w2}, 3, v{a_w2}")
    a_q = k.v.alloc(1)
    k.I(f"v_lshrrev_b32 v{a_q}, 2, v0")
    k.I(f"v_mul_u32_u24 v{a_q}, 36, v{a_q}")
    a_r2 = k.v.alloc(1)
    k.I(f"v_and_b32 v{t1}, 3, v0")
    k.I(f"v_add_u32 v{a_r2}, v{a_q}, v{t1}")
    k.I(f"v_lshlrev_b32 v{a_r2}, 3, v{a_r2}")
    a_r3 = k.v.alloc(1)
    k.I(f"v_lshlrev_b32 v{t1}, 3, v{t1}")
    k.I(f"v_add_u32 v{a_r3}, v{a_q}, v{t1}")
    k.I(f"v_lshlrev_b32 v{a_r3}, 3, v{a_r3}")
    k.v.release(a_q); k.v.release(t1)

    def wr(addr, off, r): k.I(f"ds_write_b64 v{addr}, {k.P(r)} offset:{off}")
    def rd(r, addr, off): k.I(f"ds_read_b64 {k.P(r)}, v{addr} offset:{off}")
    def bar():
        k.I("s_waitcnt lgkmcnt(0)"); k.I("s_barrier")
    def wait(): k.I("s_waitcnt lgkmcnt(0)")

    k.I("s_waitcnt vmcnt(2)")
    y = k.dft8(x, -1, KR)
    for k1 in range(1, 8): k.cmul(y[k1], y[k1], tw1[k1])
    for k1 in range(8): wr(a_t, k1 * 2048, y[k1])
    bar()
    for n1 in range(8): rd(y[n1], a_r1, n1 * 256)
    wait()
    z = k.dft8(y, -1, KR)
    for k2 in range(1, 8): k.cmul(z[k2], z[k2], tw2[k2])
    for k2 in range(8): wr(a_w2, B1 + k2 * 288, z[k2])
    bar()
    for n1 in range(8): rd(z[n1], a_r2, B1 + n1 * 32)
    wait()
    u = k.dft8(z, -1, KR)
    for k3 in range(1, 8): k.cmul(u[k3], u[k3], tw3[k3])
    for k3 in range(8): wr(a_r2, k3 * 32, u[k3])
    bar()
    for e in range(2):
        for m in range(4): rd(u[e * 4 + m], a_r3, e * 32 + m * 8)
    wait()
    v = k.dft4(u[0:4], -1) + k.dft4(u[4:8], -1)
    k.I("s_waitcnt vmcnt(0)")
    wp = k.pair()
    for i in range(8):
        wreg = wq[i // 4] + (i % 4)
        k.I(f"v_lshlrev_b32 v{wp}, 16, v{wreg}")
        k.I(f"v_and_b32 v{wp+1}, 0xffff0000, v{wreg}")
        k.cmul(v[i], v[i], wp)
    k.fpair(wp)
    u = k.dft4(v[0:4], +1) + k.dft4(v[4:8], +1)
    for e in range(2):
        for m in range(4): wr(a_r3, B1 + e * 32 + m * 8, u[e * 4 + m])
    bar()
    for k3 in range(8): rd(u[k3], a_r2, B1 + k3 * 32)
    wait()
    for k3 in range(1, 8): k.cmul(u[k3], u[k3], tw3[k3], conj=True)
    z = k.dft8(u, +1, KR)
    for n1 in range(8): wr(a_r2, n1 * 32, z[n1])
    bar()
    for k2 in range(8): rd(z[k2], a_w2, k2 * 288)
    wait()
    for k2 in range(1, 8): k.cmul(z[k2], z[k2], tw2[k2], conj=True)
    y = k.dft8(z, +1, KR)
    for n1 in range(8): wr(a_r1, B1 + n1 * 256, y[n1])
    bar()
    for k1 in range(8): rd(y[k1], a_t, B1 + k1 * 2048)
    wait()
    for k1 in range(1, 8): k.cmul(y[k1], y[k1], tw1[k1], conj=True)
    x = k.dft8(y, +1, KR)
    for n1 in range(8):
        k.I(f"buffer_store_dwordx2 {k.P(x[n1])}, v{voff}, s[{sY}:{sY+3}], s{20+n1} offen")
    k.lab(END)
    k.I("s_endpgm")
    return dict(label="k2_kernel", k=k, grid=nwg, block=256, lds=2 * 18432)

if __name__ == "__main__":
    kd = build_k2()
    assemble_file([kd], "k2_only.s")
    print("vgprs", kd["k"].v.high, "instr", len(kd["k"].L))
```

```python
from fftd import *

NTR_WG = 275
def build_k3():
    k = DK("k3", vlo=1)
    END = "k3_end"
    k.load_ptr(4, KA_WS)
    k.load_ptr(6, KA_X)
    k.I(f"s_cmp_ge_u32 s2, {256 + NTR_WG}")
    k.I(f"s_cbranch_scc1 {END}")
    vw = k.v.alloc(1)
    k.I(f"v_lshrrev_b32 v{vw}, 6, v0")
    k.I("v_and_b32 v0, 63, v0")
    k.nop(1)
    k.I(f"v_readfirstlane_b32 s3, v{vw}")
    k.v.release(vw)
    k.I(f"s_cmp_ge_u32 s2, 256")
    k.I(f"s_cbranch_scc1 k3_tr")
    sX, sI, sH, sN = 8, 12, 28, 32
    k.I("s_waitcnt lgkmcnt(0)")
    k.make_srd(sX, 6, 0, 2048 * 640 * 2)
    k.make_srd(sI, 4, WS_X4T, XT_BYTES)
    k.make_srd(sH, 4, WS_H, 2048 * 640 * 2)
    k.make_srd(sN, 4, WS_YN, 2048 * 640 * 2)
    k.I("s_lshl_b32 s16, s2, 2"); k.I("s_add_u32 s16, s16, s3")
    k.I("s_mul_i32 s17, s16, 2560")
    k.I("s_mul_i32 s18, s3, 5760")
    k.I("s_lshl_b32 s19, s16, 4")
    vst = k.v.alloc(1); k.I(f"v_lshlrev_b32 v{vst}, 14, v0")
    def ex(m): k.I(f"s_mov_b64 exec, {m}")
    q = [k.quad() for _ in range(6)]
    for i in range(6):
        if i == 5: ex("1")
        k.I(f"s_add_u32 s{36+i}, s19, {i * 64 * 16384}")
        k.I(f"buffer_load_dwordx4 v[{q[i]}:{q[i]+3}], v{vst}, s[{sI}:{sI+3}], s{36+i} offen")
    ex("-1")
    k.v.release(vst)
    xs = [k.pair() for _ in range(10)]
    v2 = k.v.alloc(1); k.I(f"v_lshlrev_b32 v{v2}, 1, v0")
    for j in range(10):
        k.I(f"v_mov_b32 v{xs[j]}, 0"); k.I(f"v_mov_b32 v{xs[j]+1}, 0")
    for j in range(10):
        k.I(f"buffer_load_short_d16_hi v{xs[j]}, v{v2}, s[{sX}:{sX+3}], s17 offen offset:{j*128}")
        k.I(f"buffer_load_short_d16_hi v{xs[j]+1}, v{v2}, s[{sX}:{sX+3}], s17 offen offset:{1280+j*128}")
    k.consts()
    tw1 = k.gen_tw(0, 640, 9)
    t1 = k.v.alloc(1)
    k.I(f"v_and_b32 v{t1}, 7, v0")
    tw2 = k.gen_tw(t1, 64, 7)
    hi = k.v.alloc(1)
    k.I(f"v_lshrrev_b32 v{hi}, 3, v0")
    a_t = k.v.alloc(1); k.I(f"v_lshlrev_b32 v{a_t}, 3, v0"); k.I(f"v_add_u32 v{a_t}, s18, v{a_t}")
    a_p2 = k.v.alloc(1)
    k.I(f"v_mul_u32_u24 v{a_p2}, 72, v{hi}"); k.I(f"v_add_u32 v{a_p2}, v{a_p2}, v{t1}")
    k.I(f"v_lshlrev_b32 v{a_p2}, 3, v{a_p2}"); k.I(f"v_add_u32 v{a_p2}, s18, v{a_p2}")
    a_w2 = k.v.alloc(1)
    k.I(f"v_mul_u32_u24 v{a_w2}, 72, v{hi}"); k.I(f"v_mad_u32_u24 v{a_w2}, v{t1}, 9, v{a_w2}")
    k.I(f"v_lshlrev_b32 v{a_w2}, 3, v{a_w2}"); k.I(f"v_add_u32 v{a_w2}, s18, v{a_w2}")
    a_z = k.v.alloc(1)
    k.I(f"v_mad_u32_u24 v{a_z}, v{t1}, 10, v{hi}")
    k.I(f"v_lshlrev_b32 v{a_z}, 3, v{a_z}"); k.I(f"v_add_u32 v{a_z}, s18, v{a_z}")
    a_m = k.v.alloc(1)
    k.I(f"v_sub_u32 v{a_m}, 320, v0"); k.I(f"v_lshlrev_b32 v{a_m}, 3, v{a_m}"); k.I(f"v_add_u32 v{a_m}, s18, v{a_m}")
    k.v.release(hi); k.v.release(t1)
    def wr(addr, off, r): k.I(f"ds_write_b64 v{addr}, {k.P(r)} offset:{off}")
    def rd(r, addr, off): k.I(f"ds_read_b64 {k.P(r)}, v{addr} offset:{off}")
    def wait(): k.I("s_waitcnt lgkmcnt(0)")
    k.I("s_waitcnt vmcnt(20)")
    zk = k.pair(); zm = k.pair()
    for i in range(6):
        A, B = q[i], q[i] + 2
        if i in (0, 5):
            ex("1")
            k.I(f"v_mov_b32 v{A+1}, 0"); k.I(f"v_mov_b32 v{B+1}, 0")
            if i == 0: ex("-1")
        k.cadd_pi(zk, A, B)
        k.I(f"v_pk_add_f32 {k.P(zm)}, {k.P(A)}, {k.P(B)} op_sel:[0,1] op_sel_hi:[1,0] neg_hi:[1,0]")
        wr(a_t, i * 512, zk)
        wr(a_m, (320 - 64 * i) * 8, zm)
        k.v.release(q[i], 4)
    ex("-1")
    k.fpair(zk); k.fpair(zm)
    A = [k.pair() for _ in range(8)]; Bq = [k.pair() for _ in range(8)]
    for kk in range(8): rd(A[kk], a_z, kk * 640)
    ex("0xffff")
    for kk in range(8): rd(Bq[kk], a_z, kk * 640 + 64)
    ex("-1")
    wait()
    A = k.dft8(A, +1, k.KR)
    for tp in range(1, 8): k.cmul(A[tp], A[tp], tw2[tp], conj=True)
    Bq = k.dft8(Bq, +1, k.KR)
    for tp in range(1, 8): k.cmul(Bq[tp], Bq[tp], tw2[tp], conj=True)
    for tp in range(8): wr(a_p2, tp * 72, A[tp])
    ex("0xffff")
    for tp in range(8): wr(a_p2, 4608 + tp * 72, Bq[tp])
    ex("-1")
    for r2 in range(8): rd(A[r2], a_w2, r2 * 8)
    ex("0xffff")
    for r2 in range(8): rd(Bq[r2], a_w2, 4608 + r2 * 8)
    ex("-1")
    wait()
    A = k.dft8(A, +1, k.KR)
    Bq = k.dft8(Bq, +1, k.KR)
    for j2 in range(8): wr(a_p2, j2 * 64, A[j2])
    ex("0xffff")
    for j2 in range(8): wr(a_p2, 4608 + j2 * 64, Bq[j2])
    ex("-1")
    y = A + Bq[:2]
    for p in Bq[2:]: k.fpair(p)
    for r in range(10): rd(y[r], a_t, r * 576)
    wait()
    for r in range(1, 10): k.cmul(y[r], y[r], tw1[r], conj=True)
    for w in tw1[1:] + tw2[1:]: k.fpair(w)
    z = k.dft10(y, +1, k.KC, k.KS)
    KSC = k.pair(); tmp = k.v.alloc(1)
    sc = 1.0 / (2 * 2048 * 640)
    k.I(f"v_mov_b32 v{KSC}, {hexf(sc)}"); k.I(f"v_mov_b32 v{KSC+1}, {hexf(sc)}")
    k.I("s_waitcnt vmcnt(0)")
    for j in range(10):
        k.kmul(z[j], z[j], KSC)
        k.bf16r_pair(z[j], z[j], tmp)
        k.cadd(z[j], z[j], xs[j])
        k.bf16r_pair(z[j], z[j], tmp)
    for p in xs: k.fpair(p)
    k.fpair(KSC); k.v.release(tmp)
    for j in range(10):
        k.I(f"buffer_store_short_d16_hi v{z[j]}, v{v2}, s[{sH}:{sH+3}], s17 offen offset:{j*128}")
        k.I(f"buffer_store_short_d16_hi v{z[j]+1}, v{v2}, s[{sH}:{sH+3}], s17 offen offset:{1280+j*128}")
    k.layernorm(z, 20)
    k.layernorm(z, 20)
    for j in range(10):
        k.I(f"buffer_store_short_d16_hi v{z[j]}, v{v2}, s[{sN}:{sN+3}], s17 offen offset:{j*128}")
        k.I(f"buffer_store_short_d16_hi v{z[j]+1}, v{v2}, s[{sN}:{sN+3}], s17 offen offset:{1280+j*128}")
    k.I("s_endpgm")
    k.lab("k3_tr")
    k.load_ptr(8, KA_W1); k.load_ptr(10, KA_W2)
    k.I("s_sub_u32 s16, s2, 256"); k.I("s_lshl_b32 s16, s16, 2"); k.I("s_add_u32 s16, s16, s3")
    sS, sD = 12, 24
    k.I("s_waitcnt lgkmcnt(0)")
    k.I("s_cmp_ge_u32 s16, 560")
    k.I("s_cbranch_scc1 k3_w2set")
    k.make_srd(sS, 8, 0, 640 * 3456); k.make_srd(sD, 4, WS_W1T, 1728 * 1280)
    k.I(f"s_mul_hi_u32 s17, s16, 0x{(1<<32)//40+1:x}")
    k.I("s_mul_i32 s18, s17, 40"); k.I("s_sub_u32 s18, s16, s18")
    k.I("s_mov_b32 s19, 3456"); k.I("s_mov_b32 s20, 1280"); k.I("s_mov_b32 s21, 1728")
    k.I("s_branch k3_trc")
    k.lab("k3_w2set")
    k.I("s_sub_u32 s16, s16, 560")
    k.make_srd(sS, 10, 0, 1728 * 1280); k.make_srd(sD, 4, WS_W2T, 640 * 3456)
    k.I(f"s_mul_hi_u32 s17, s16, 0x{(1<<32)//108+1:x}")
    k.I("s_mul_i32 s18, s17, 108"); k.I("s_sub_u32 s18, s16, s18")
    k.I("s_mov_b32 s19, 1280"); k.I("s_mov_b32 s20, 3456"); k.I("s_mov_b32 s21, 640")
    k.lab("k3_trc")
    vn = k.v.alloc(1)
    k.I("s_lshl_b32 s22, s17, 7")
    k.I(f"v_lshl_add_u32 v{vn}, v0, 1, s22")
    k.I(f"v_cmp_gt_u32 vcc, s21, v{vn}")
    k.I("s_and_saveexec_b64 s[28:29], vcc")
    k.I(f"s_cbranch_execz {END}")
    vso = k.v.alloc(1); k.I(f"v_lshlrev_b32 v{vso}, 1, v{vn}")
    vdo = k.v.alloc(1); k.I(f"v_mul_lo_u32 v{vdo}, v{vn}, s20")
    k.I("s_lshl_b32 s23, s18, 4"); k.I("s_mul_i32 s23, s23, s19")
    rows = [k.v.alloc(1) for _ in range(16)]
    for r in range(16):
        k.I(f"buffer_load_dword v{rows[r]}, v{vso}, s[{sS}:{sS+3}], s23 offen")
        k.I("s_add_u32 s23, s23, s19")
    o0 = [k.quad(), k.quad()]; o1 = [k.quad(), k.quad()]
    k.I("s_mov_b32 s30, 0x05040100"); k.I("s_mov_b32 s31, 0x07060302")
    k.I("s_waitcnt vmcnt(0)")
    for p in range(8):
        k.I(f"v_perm_b32 v{o0[p//4]+p%4}, v{rows[2*p+1]}, v{rows[2*p]}, s30")
        k.I(f"v_perm_b32 v{o1[p//4]+p%4}, v{rows[2*p+1]}, v{rows[2*p]}, s31")
    k.I("s_lshl_b32 s23, s18, 5")
    k.I("s_add_u32 s32, s23, s20")
    for hh in range(2):
        k.I(f"buffer_store_dwordx4 v[{o0[hh]}:{o0[hh]+3}], v{vdo}, s[{sD}:{sD+3}], s23 offen offset:{16*hh}")
        k.I(f"buffer_store_dwordx4 v[{o1[hh]}:{o1[hh]+3}], v{vdo}, s[{sD}:{sD+3}], s32 offen offset:{16*hh}")
    k.lab(END)
    k.I("s_endpgm")
    return dict(label="k3_kernel", k=k, grid=256 + NTR_WG, block=256, lds=4 * 5760)

if __name__ == "__main__":
    from k1 import build_k1
    from k2 import build_k2
    kd = build_k3()
    print("vgprs", kd["k"].v.high, "instr", len(kd["k"].L))
    assemble_file([build_k1(), build_k2(), kd], "k123.s")
    from gemm import build_k4, build_k5
    assemble_file([build_k1(), build_k2(), build_k3(), build_k4(), build_k5()], "cdna_kernels/" + KNAME + ".s")
```

```python
from asmlib import *
KNAME = "sequential_preLN__spectral_gfnet__mixer_channel_mlp__prompt"
WS_X1T = 0x0
WS_X4T = 0x600000
WS_WTP = 0xC00000
WS_H   = 0x1000000
WS_YN  = 0x1400000
WS_H1  = 0x1800000
WS_W1T = 0x2000000
WS_W2T = 0x2400000
XT_BYTES = 321 * 16384
WTP_BYTES = 321 * 8192
KA_X, KA_WR, KA_WI, KA_BX, KA_W1, KA_B1, KA_W2, KA_B2, KA_OUT, KA_DBG, KA_WS = [8 * i for i in range(11)]

def f32bits(x):
    return int(np.array([x], np.float32).view(np.uint32)[0])
def hexf(x):
    return f"0x{f32bits(x):08x}"

class GK(Kern):
    def load_ptr(self, sreg, ka_off):
        self.I(f"s_load_dwordx2 s[{sreg}:{sreg+1}], s[0:1], {ka_off}")
    def make_srd(self, d, base_lo, offset, nbytes):
        if offset:
            self.I(f"s_add_u32 s{d}, s{base_lo}, 0x{offset:x}")
            self.I(f"s_addc_u32 s{d+1}, s{base_lo+1}, 0")
        else:
            self.I(f"s_mov_b32 s{d}, s{base_lo}")
            self.I(f"s_mov_b32 s{d+1}, s{base_lo+1}")
        self.I(f"s_mov_b32 s{d+2}, 0x{nbytes:x}")
        self.I(f"s_mov_b32 s{d+3}, 0x00020000")
    def gen_tw(self, idx, N, npow, sign=-1):
        t = self.v.alloc(1)
        w = [None] + [self.pair() for _ in range(npow)]
        self.I(f"v_cvt_f32_u32 v{t}, v{idx}")
        self.I(f"v_mul_f32 v{t}, {hexf(sign / N)}, v{t}")
        self.I(f"v_cos_f32 v{w[1]}, v{t}")
        self.I(f"v_sin_f32 v{w[1]+1}, v{t}")
        self.nop(1)
        self.v.release(t)
        rec = {2: (1, 1), 3: (2, 1), 4: (2, 2), 5: (4, 1), 6: (3, 3), 7: (4, 3), 8: (4, 4), 9: (8, 1)}
        for p in range(2, npow + 1):
            a, b = rec[p]
            self.cmul(w[p], w[a], w[b])
        return w
    prof = False
    def prof_start(self):
        if not self.prof: return
        self.pn = 0
        self.I("s_memtime s[80:81]")
        self.I("s_memrealtime s[94:95]")
    def prof_mark(self):
        if not self.prof: return
        self.I(f"s_memtime s[{82+2*self.pn}:{83+2*self.pn}]"); self.pn += 1
    def prof_end(self, wavereg=None):
        if not self.prof: return
        lab = self.newlabel("pe")
        self.I("s_load_dwordx2 s[98:99], s[0:1], 72")
        self.I("s_waitcnt lgkmcnt(0)")
        self.I("s_cmp_lg_u32 s2, 0"); self.I(f"s_cbranch_scc1 {lab}")
        if wavereg is not None:
            self.I(f"s_cmp_lg_u32 s{wavereg}, 0"); self.I(f"s_cbranch_scc1 {lab}")
        self.I("s_mov_b32 s76, s98"); self.I("s_mov_b32 s77, s99"); self.I("s_mov_b32 s78, 256"); self.I("s_mov_b32 s79, 0x00020000")
        vd = self.v.alloc(1); vz = self.v.alloc(1)
        self.I(f"v_mov_b32 v{vz}, 0")
        for i in range(self.pn):
            self.I(f"s_sub_u32 s75, s{82+2*i}, s80")
            self.I(f"v_mov_b32 v{vd}, s75")
            self.I(f"buffer_store_dword v{vd}, v{vz}, s[76:79], 0 offen offset:{4*i}")
        self.lab(lab)
        self.I("s_memrealtime s[96:97]")
        self.I("s_load_dwordx2 s[98:99], s[0:1], 80")
        self.I("s_waitcnt lgkmcnt(0)")
        self.I(f"s_add_u32 s76, s98, 0x{0x3000000 + self.kid*0x10000:x}"); self.I("s_addc_u32 s77, s99, 0"); self.I("s_mov_b32 s78, 0x10000"); self.I("s_mov_b32 s79, 0x00020000")
        vd = self.v.alloc(4, 4); vz = self.v.alloc(1)
        self.I(f"v_mov_b32 v{vz}, 0"); self.I("s_lshl_b32 s75, s2, 4")
        self.I(f"v_mov_b32 v{vd}, s94"); self.I(f"v_mov_b32 v{vd+1}, s95"); self.I(f"v_mov_b32 v{vd+2}, s96"); self.I(f"v_mov_b32 v{vd+3}, s97")
        self.I(f"buffer_store_dwordx4 v[{vd}:{vd+3}], v{vz}, s[76:79], s75 offen")
    def emit_kernel(self, vgprs=None, sgprs=None, lds_static=0):
        pass

def kernel_text(k, label, accum=None):
    nv = max(k.v.high, 1)
    nv = (nv + 7) // 8 * 8
    acc = accum if accum is not None else ((nv + 3) // 4 * 4)
    tot = nv if accum is None else accum + k.agprs
    body = k.text()
    hdr = (f".globl {label}\n.p2align 8\n.type {label},@function\n{label}:\n")
    desc = (f".amdhsa_kernel {label}\n"
            f"  .amdhsa_next_free_vgpr {tot}\n"
            f"  .amdhsa_next_free_sgpr 102\n"
            f"  .amdhsa_accum_offset {acc}\n"
            f"  .amdhsa_group_segment_fixed_size 0\n"
            f"  .amdhsa_kernarg_size 88\n"
            f"  .amdhsa_user_sgpr_count 2\n"
            f"  .amdhsa_user_sgpr_kernarg_segment_ptr 1\n"
            f"  .amdhsa_system_sgpr_workgroup_id_x 1\n"
            f".end_amdhsa_kernel\n")
    return hdr + body, desc

HEADER = """; Kernarg layout for this problem (88 bytes, ptrs only, base s[0:1]):
"""

def assemble_file(kernels, path):
    s = HEADER
    for kd in kernels:
        g = kd["grid"]; b = kd["block"]
        s += f"; @launch kernel={kd['label']} grid=({g},1,1) block=({b},1,1) lds={kd['lds']}\n"
    s += '.amdgcn_target "amdgcn-amd-amdhsa--gfx950"\n.text\n'
    descs = []
    seen = set()
    for kd in kernels:
        if kd["label"] in seen: continue
        seen.add(kd["label"])
        t, d = kernel_text(kd["k"], kd["label"], kd.get("accum"))
        s += t; descs.append(d)
    s += '.section .rodata,"a"\n'
    for d in descs:
        s += ".p2align 6\n" + d
    open(path, "w").write(s)
    return s
```

```python
from common import *

def build_gemm2(name, M, N, K, TM, TN, mode, NST=4, prof=False, xmap=None, spec=True, NPRE=2, NRAMP=2):
    k = GK(name, vlo=1)
    END = name + "_end"
    NTN = (N + TN - 1) // TN; NTM = M // TM
    nwg = NTN * NTM
    MT = TM // 64; NT = TN // 16
    GA = TM // 8; GB = (TN + 7) // 8
    assert GA % 4 == 0
    PERA = GA // 4; PERB = (GB + 3) // 4; PER = PERA + PERB
    STAGE = PER * 4 * 1024
    NIT = K // 64
    k.load_ptr(4, KA_WS)
    k.load_ptr(6, KA_B1 if mode == 1 else KA_B2)
    if mode == 2: k.load_ptr(36, KA_OUT)
    if prof: k.load_ptr(38, KA_DBG)
    k.I(f"s_cmp_ge_u32 s2, {nwg}")
    k.I(f"s_cbranch_scc1 {END}")
    if prof: k.I("s_memtime s[60:61]")
    sA, sB, sBias, sC, sR, sDb = 8, 12, 16, 20, 24, 56
    vw = k.v.alloc(1)
    k.I(f"v_lshrrev_b32 v{vw}, 6, v0")
    lane = k.v.alloc(1); k.I(f"v_and_b32 v{lane}, 63, v0")
    k.I(f"v_readfirstlane_b32 s3, v{vw}")
    if spec:
        k.I("s_lshr_b32 s70, s3, 2"); k.I("s_and_b32 s3, s3, 3")
    k.I("s_waitcnt lgkmcnt(0)")
    if prof: k.I("s_memtime s[68:69]")
    if mode == 1:
        k.make_srd(sA, 4, WS_YN, M * K * 2); k.make_srd(sB, 4, WS_W1T, N * K * 2)
        k.make_srd(sC, 4, WS_H1, M * N * 2)
    else:
        k.make_srd(sA, 4, WS_H1, M * K * 2); k.make_srd(sB, 4, WS_W2T, N * K * 2)
        k.make_srd(sC, 36, 0, M * N * 2); k.make_srd(sR, 4, WS_H, M * N * 2)
    k.make_srd(sBias, 6, 0, N * 2)
    if prof: k.make_srd(sDb, 38, 0, 256)
    lg = int(math.log2(NTM)); assert 1 << lg == NTM
    if xmap is None:
        k.I(f"s_and_b32 s29, s2, {NTM-1}"); k.I(f"s_lshr_b32 s30, s2, {lg}")
    else:
        xm, xn = xmap; bm = NTM // xm; bn = NTN // xn
        assert xm * xn == 8 and bm * bn * 8 == nwg
        lbm = int(math.log2(bm)); lxm = int(math.log2(xm))
        k.I("s_and_b32 s33, s2, 7"); k.I("s_lshr_b32 s34, s2, 3")
        k.I(f"s_and_b32 s29, s33, {xm-1}"); k.I(f"s_lshl_b32 s29, s29, {lbm}")
        k.I(f"s_and_b32 s30, s34, {bm-1}"); k.I("s_add_u32 s29, s29, s30")
        k.I(f"s_lshr_b32 s30, s33, {lxm}"); k.I(f"s_mul_i32 s30, s30, {bn}")
        k.I(f"s_lshr_b32 s34, s34, {lbm}"); k.I("s_add_u32 s30, s30, s34")
    k.I(f"s_mul_i32 s31, s29, {TM}")
    k.I(f"s_mul_i32 s32, s30, {TN}")
    vr = k.v.alloc(1); vc = k.v.alloc(1); vsw = k.v.alloc(1)
    k.I(f"v_lshrrev_b32 v{vr}, 3, v{lane}")
    k.I(f"v_lshrrev_b32 v{vsw}, 4, v{lane}")
    k.I("s_and_b32 s33, s3, 1"); k.I("s_lshl_b32 s33, s33, 2")
    k.I(f"v_add_u32 v{vsw}, s33, v{vsw}")
    k.I(f"v_and_b32 v{vc}, 7, v{lane}")
    k.I(f"v_xor_b32 v{vc}, v{vc}, v{vsw}")
    k.I("s_lshl_b32 s33, s3, 3")
    vgA = k.v.alloc(1); vgB = k.v.alloc(1)
    k.I("s_add_u32 s34, s33, s31"); k.I(f"v_add_u32 v{vgA}, s34, v{vr}")
    k.I(f"v_mul_u32_u24 v{vgA}, {K*2}, v{vgA}"); k.I(f"v_lshl_add_u32 v{vgA}, v{vc}, 4, v{vgA}")
    k.I("s_add_u32 s34, s33, s32"); k.I(f"v_add_u32 v{vgB}, s34, v{vr}")
    k.I(f"v_mul_u32_u24 v{vgB}, {K*2}, v{vgB}"); k.I(f"v_lshl_add_u32 v{vgB}, v{vc}, 4, v{vgB}")
    k.v.release(vr); k.v.release(vc); k.v.release(vsw)
    k.I("s_lshl_b32 s35, s3, 10")
    def dma(j):
        slot = j % NST
        for i in range(PERA):
            k.I(f"s_add_u32 m0, s35, {slot*STAGE + i*4096}")
            k.I(f"s_mov_b32 s40, {i*32*K*2 + j*128}")
            k.I(f"buffer_load_dwordx4 v{vgA}, s[{sA}:{sA+3}], s40 offen lds")
        for i in range(PERB):
            k.I(f"s_add_u32 m0, s35, {slot*STAGE + GA*1024 + i*4096}")
            k.I(f"s_mov_b32 s41, {i*32*K*2 + j*128}")
            k.I(f"buffer_load_dwordx4 v{vgB}, s[{sB}:{sB+3}], s41 offen lds")
    if spec:
        CONS = name + "_cons"
        k.I("s_cmp_eq_u32 s70, 0"); k.I(f"s_cbranch_scc1 {CONS}")
        issued = []
        def issue(st):
            dma(st); issued.append(st)
        def wait_for(st):
            k.I(f"s_waitcnt vmcnt({PER*(len(issued) - 1 - issued.index(st))})")
        for st in range(min(NPRE, NIT)): issue(st)
        wait_for(0)
        k.I("s_barrier")
        for j in range(NIT):
            if j + 1 < NIT: wait_for(j + 1)
            k.I("s_barrier")
            cnt_i = 0
            while len(issued) < NIT and len(issued) <= j + NST - 1 and cnt_i < NRAMP:
                issue(len(issued)); cnt_i += 1
        k.I("s_endpgm")
        k.lab(CONS)
    else:
        for j in range(NST - 1): dma(j)
    l15 = k.v.alloc(1); k.I(f"v_and_b32 v{l15}, 15, v{lane}")
    lq = k.v.alloc(1); k.I(f"v_lshrrev_b32 v{lq}, 4, v{lane}")
    vf0 = k.v.alloc(1); vt = k.v.alloc(1)
    k.I(f"v_lshrrev_b32 v{vt}, 1, v{l15}"); k.I(f"v_xor_b32 v{vt}, v{vt}, v{lq}")
    k.I(f"v_lshlrev_b32 v{vf0}, 7, v{l15}"); k.I(f"v_lshl_add_u32 v{vf0}, v{vt}, 4, v{vf0}")
    k.v.release(vt)
    k.I(f"s_mul_i32 s33, s3, {MT*16*128}")
    vm = [[k.v.alloc(1) for _ in range(2)] for s in range(NST)]
    vn = [[k.v.alloc(1) for _ in range(2)] for s in range(NST)]
    for s in range(NST):
        k.I(f"s_add_u32 s34, s33, {s*STAGE}")
        k.I(f"v_add_u32 v{vm[s][0]}, s34, v{vf0}"); k.I(f"v_xor_b32 v{vm[s][1]}, 64, v{vm[s][0]}")
        k.I(f"v_add_u32 v{vn[s][0]}, 0x{s*STAGE + GA*1024:x}, v{vf0}"); k.I(f"v_xor_b32 v{vn[s][1]}, 64, v{vn[s][0]}")
    vbn = k.v.alloc(1)
    k.I(f"v_lshl_add_u32 v{vbn}, v{lq}, 2, s32"); k.I(f"v_lshlrev_b32 v{vbn}, 1, v{vbn}")
    bias = [k.pair() for nt in range(NT)]
    for nt in range(NT):
        k.I(f"buffer_load_dwordx2 {k.P(bias[nt])}, v{vbn}, s[{sBias}:{sBias+3}], 0 offen offset:{nt*32}")
    acc = [[k.quad() for nt in range(NT)] for mt in range(MT)]
    for mt in range(MT):
        for nt in range(NT):
            for r in range(4): k.I(f"v_mov_b32 v{acc[mt][nt]+r}, 0")
    fn = [[k.quad() for _ in range(NT)] for b in range(2)]
    fm = [[k.quad() for _ in range(MT)] for b in range(2)]
    def reads(j, ks, b):
        slot = j % NST
        for mt in range(MT):
            k.I(f"ds_read_b128 v[{fm[b][mt]}:{fm[b][mt]+3}], v{vm[slot][ks]} offset:{mt*2048}")
        for nt in range(NT):
            k.I(f"ds_read_b128 v[{fn[b][nt]}:{fn[b][nt]+3}], v{vn[slot][ks]} offset:{nt*2048}")
    def mfmas(b):
        for nt in range(NT):
            for mt in range(MT):
                a = acc[mt][nt]
                k.I(f"v_mfma_f32_16x16x32_bf16 v[{a}:{a+3}], v[{fn[b][nt]}:{fn[b][nt]+3}], v[{fm[b][mt]}:{fm[b][mt]+3}], v[{a}:{a+3}]")
    NF = MT + NT
    inflight_after0 = min(NST - 1, NIT) - 1
    if not spec: k.I(f"s_waitcnt vmcnt({PER*inflight_after0})")
    k.I("s_barrier")
    if prof: k.I("s_memtime s[62:63]")
    reads(0, 0, 0)
    for j in range(NIT):
        if j + 1 < NIT:
            newer = min(j + NST - 2, NIT - 1) - (j + 1)
            if not spec: k.I(f"s_waitcnt vmcnt({PER*newer})")
        k.I("s_barrier")
        if j + NST - 1 < NIT and not spec: dma(j + NST - 1)
        reads(j, 1, 1)
        k.I(f"s_waitcnt lgkmcnt({NF})")
        mfmas(0)
        if j + 1 < NIT:
            reads(j + 1, 0, 0)
            k.I(f"s_waitcnt lgkmcnt({NF})")
        else:
            k.I("s_waitcnt lgkmcnt(0)")
        mfmas(1)
    if prof: k.I("s_memtime s[64:65]")
    k.I("s_waitcnt vmcnt(0)")
    k.nop(12)
    vo = k.v.alloc(1)
    k.I(f"s_mul_i32 s33, s3, {MT*16}"); k.I("s_add_u32 s33, s33, s31")
    k.I(f"v_add_u32 v{vo}, s33, v{l15}"); k.I(f"v_mul_u32_u24 v{vo}, {N*2}, v{vo}")
    k.I(f"v_add_u32 v{vo}, v{vo}, v{vbn}")
    c1 = -2 * math.log2(math.e) * math.sqrt(2 / math.pi); c2 = c1 * 0.044715
    if mode == 1:
        cc1 = k.pair(); cc2 = k.pair(); one = k.pair()
        for p, val in ((cc1, c1), (cc2, c2), (one, 1.0)):
            k.I(f"v_mov_b32 v{p}, {hexf(val)}"); k.I(f"v_mov_b32 v{p+1}, {hexf(val)}")
    res = None
    if mode == 2:
        res = [[k.pair() for nt in range(NT)] for mt in range(MT)]
        for nt in range(NT):
            for mt in range(MT):
                k.I(f"s_mov_b32 s42, {mt*16*N*2}")
                k.I(f"buffer_load_dwordx2 {k.P(res[mt][nt])}, v{vo}, s[{sR}:{sR+3}], s42 offen offset:{nt*32}")
    t = [k.pair(), k.pair()]; y = [k.pair(), k.pair()]
    pk = k.pair(); bq = [k.pair(), k.pair()]
    cnt = 0
    for nt in range(NT):
        if N % TN and nt > 0:
            k.I(f"s_add_u32 s33, s32, {nt*16}"); k.I(f"s_cmp_ge_u32 s33, {N}")
            k.I(f"s_cbranch_scc1 {END}")
        b = bias[nt]
        k.I(f"v_lshlrev_b32 v{bq[0]}, 16, v{b}"); k.I(f"v_and_b32 v{bq[0]+1}, 0xffff0000, v{b}")
        k.I(f"v_lshlrev_b32 v{bq[1]}, 16, v{b+1}"); k.I(f"v_and_b32 v{bq[1]+1}, 0xffff0000, v{b+1}")
        for mt in range(MT):
            a = acc[mt][nt]
            k.I(f"v_cvt_pk_bf16_f32 v{pk}, v{a}, v{a+1}"); k.I(f"v_cvt_pk_bf16_f32 v{pk+1}, v{a+2}, v{a+3}")
            for h in range(2):
                k.I(f"v_lshlrev_b32 v{t[h]}, 16, v{pk+h}"); k.I(f"v_and_b32 v{t[h]+1}, 0xffff0000, v{pk+h}")
            for h in range(2): k.I(f"v_pk_add_f32 {k.P(t[h])}, {k.P(t[h])}, {k.P(bq[h])}")
            k.I(f"v_cvt_pk_bf16_f32 v{pk}, v{t[0]}, v{t[0]+1}"); k.I(f"v_cvt_pk_bf16_f32 v{pk+1}, v{t[1]}, v{t[1]+1}")
            for h in range(2):
                k.I(f"v_lshlrev_b32 v{t[h]}, 16, v{pk+h}"); k.I(f"v_and_b32 v{t[h]+1}, 0xffff0000, v{pk+h}")
            if mode == 1:
                for h in range(2): k.I(f"v_pk_mul_f32 {k.P(y[h])}, {k.P(t[h])}, {k.P(t[h])}")
                for h in range(2): k.I(f"v_pk_fma_f32 {k.P(y[h])}, {k.P(y[h])}, {k.P(cc2)}, {k.P(cc1)}")
                for h in range(2): k.I(f"v_pk_mul_f32 {k.P(y[h])}, {k.P(y[h])}, {k.P(t[h])}")
                for h in range(2):
                    k.I(f"v_exp_f32 v{y[h]}, v{y[h]}"); k.I(f"v_exp_f32 v{y[h]+1}, v{y[h]+1}")
                k.nop(1)
                for h in range(2): k.I(f"v_pk_add_f32 {k.P(y[h])}, {k.P(y[h])}, {k.P(one)}")
                for h in range(2):
                    k.I(f"v_rcp_f32 v{y[h]}, v{y[h]}"); k.I(f"v_rcp_f32 v{y[h]+1}, v{y[h]+1}")
                k.nop(1)
                for h in range(2): k.I(f"v_pk_mul_f32 {k.P(t[h])}, {k.P(t[h])}, {k.P(y[h])}")
            else:
                if cnt == 0: k.I("s_waitcnt vmcnt(0)")
                rr = res[mt][nt]
                for h in range(2):
                    k.I(f"v_lshlrev_b32 v{y[h]}, 16, v{rr+h}"); k.I(f"v_and_b32 v{y[h]+1}, 0xffff0000, v{rr+h}")
                for h in range(2): k.I(f"v_pk_add_f32 {k.P(t[h])}, {k.P(t[h])}, {k.P(y[h])}")
            k.I(f"v_cvt_pk_bf16_f32 v{pk}, v{t[0]}, v{t[0]+1}"); k.I(f"v_cvt_pk_bf16_f32 v{pk+1}, v{t[1]}, v{t[1]+1}")
            k.I(f"s_mov_b32 s42, {mt*16*N*2}")
            k.I(f"buffer_store_dwordx2 {k.P(pk)}, v{vo}, s[{sC}:{sC+3}], s42 offen offset:{nt*32}")
            k.nop(2)
            cnt += 1
    if prof:
        k.I("s_memtime s[66:67]")
        k.I("s_waitcnt lgkmcnt(0)")
        k.I("s_sub_u32 s68, s68, s60"); k.I("s_sub_u32 s62, s62, s60"); k.I("s_sub_u32 s64, s64, s60"); k.I("s_sub_u32 s66, s66, s60")
        vd = k.v.alloc(1); vz = k.v.alloc(1)
        k.I("s_cmp_lg_u32 s2, 0"); k.I(f"s_cbranch_scc1 {END}")
        k.I("s_cmp_lg_u32 s3, 0"); k.I(f"s_cbranch_scc1 {END}")
        k.I(f"v_mov_b32 v{vz}, 0")
        for i, sr in enumerate((62, 64, 66, 68)):
            k.I(f"v_mov_b32 v{vd}, s{sr}")
            k.I(f"buffer_store_dword v{vd}, v{vz}, s[{sDb}:{sDb+3}], 0 offen offset:{4*i}")
    k.lab(END)
    k.I("s_endpgm")
    return dict(label=name + "_kernel", k=k, grid=nwg, block=512 if spec else 256, lds=NST * STAGE)

def build_k4(**kw): return build_gemm2("k4", 2048, 1728, 640, 128, 112, 1, NST=kw.get("NST", 4), prof=kw.get("prof", False), xmap=kw.get("xmap", (4, 2)))
def build_k5(**kw): return build_gemm2("k5", 2048, 640, 1728, 64, 80, 2, NST=kw.get("NST", 6), prof=kw.get("prof", False), xmap=kw.get("xmap", (4, 2)))

if __name__ == "__main__":
    import sys
    prof = len(sys.argv) > 1
    for f in (build_k4, build_k5):
        kd = f(prof=prof); print(kd["label"], "vgprs", kd["k"].v.high, "instr", len(kd["k"].L), "grid", kd["grid"], "lds", kd["lds"])
    from k1 import build_k1
    from k2 import build_k2
    from k3 import build_k3
    assemble_file([build_k1(), build_k2(), build_k3(), build_k4(prof=prof), build_k5(prof=prof)], "v2.s")
```

```python
from common import *

def build_k2(nwg=321):
    k = GK("k2", vlo=1); k.kid = 1
    END = "k2_end"
    k.load_ptr(4, KA_WS)
    k.I(f"s_cmp_ge_u32 s2, {nwg}")
    k.I(f"s_cbranch_scc1 {END}")
    sX, sY, sW = 8, 12, 16
    k.prof_start()
    k.I("s_waitcnt lgkmcnt(0)")
    k.prof_mark()
    k.make_srd(sX, 4, WS_X1T, XT_BYTES)
    k.make_srd(sY, 4, WS_X4T, XT_BYTES)
    k.make_srd(sW, 4, WS_WTP, WTP_BYTES)
    k.I("s_lshl_b32 s20, s2, 14")
    for n1 in range(1, 8):
        k.I(f"s_add_u32 s{20+n1}, s20, {n1*2048}")
    k.I("s_lshl_b32 s28, s2, 13")
    voff = k.v.alloc(1); k.I(f"v_lshlrev_b32 v{voff}, 3, v0")
    vw = k.v.alloc(1); k.I(f"v_lshlrev_b32 v{vw}, 5, v0")
    x = [k.pair() for _ in range(8)]
    for n1 in range(8):
        k.I(f"buffer_load_dwordx2 {k.P(x[n1])}, v{voff}, s[{sX}:{sX+3}], s{20+n1} offen")
    wq = [k.quad(), k.quad()]
    k.I(f"buffer_load_dwordx4 v[{wq[0]}:{wq[0]+3}], v{vw}, s[{sW}:{sW+3}], s28 offen")
    k.I(f"buffer_load_dwordx4 v[{wq[1]}:{wq[1]+3}], v{vw}, s[{sW}:{sW+3}], s28 offen offset:16")
    KR = k.pair()
    k.I(f"v_mov_b32 v{KR}, {hexf(np.sqrt(0.5))}")
    k.I(f"v_mov_b32 v{KR+1}, {hexf(np.sqrt(0.5))}")
    t1 = k.v.alloc(1)
    tw1 = k.gen_tw(0, 2048, 7)
    k.I(f"v_and_b32 v{t1}, 31, v0")
    tw2 = k.gen_tw(t1, 256, 7)
    k.I(f"v_and_b32 v{t1}, 3, v0")
    tw3 = k.gen_tw(t1, 32, 7)
    B1 = 18432
    a_t = voff
    a_r1 = k.v.alloc(1)
    k.I(f"v_lshrrev_b32 v{a_r1}, 5, v0")
    k.I(f"v_lshlrev_b32 v{a_r1}, 8, v{a_r1}")
    k.I(f"v_and_b32 v{t1}, 31, v0")
    k.I(f"v_add_u32 v{a_r1}, v{a_r1}, v{t1}")
    k.I(f"v_lshlrev_b32 v{a_r1}, 3, v{a_r1}")
    a_w2 = k.v.alloc(1)
    k.I(f"v_lshrrev_b32 v{a_w2}, 5, v0")
    k.I(f"v_mul_u32_u24 v{a_w2}, 288, v{a_w2}")
    k.I(f"v_add_u32 v{a_w2}, v{a_w2}, v{t1}")
    k.I(f"v_lshlrev_b32 v{a_w2}, 3, v{a_w2}")
    a_q = k.v.alloc(1)
    k.I(f"v_lshrrev_b32 v{a_q}, 2, v0")
    k.I(f"v_mul_u32_u24 v{a_q}, 36, v{a_q}")
    a_r2 = k.v.alloc(1)
    k.I(f"v_and_b32 v{t1}, 3, v0")
    k.I(f"v_add_u32 v{a_r2}, v{a_q}, v{t1}")
    k.I(f"v_lshlrev_b32 v{a_r2}, 3, v{a_r2}")
    a_r3 = k.v.alloc(1)
    k.I(f"v_lshlrev_b32 v{t1}, 3, v{t1}")
    k.I(f"v_add_u32 v{a_r3}, v{a_q}, v{t1}")
    k.I(f"v_lshlrev_b32 v{a_r3}, 3, v{a_r3}")
    k.v.release(a_q); k.v.release(t1)

    def wr(addr, off, r): k.I(f"ds_write_b64 v{addr}, {k.P(r)} offset:{off}")
    def rd(r, addr, off): k.I(f"ds_read_b64 {k.P(r)}, v{addr} offset:{off}")
    def bar():
        k.I("s_waitcnt lgkmcnt(0)"); k.I("s_barrier")
    def wait(): k.I("s_waitcnt lgkmcnt(0)")

    k.prof_mark()
    k.I("s_waitcnt vmcnt(2)")
    k.prof_mark()
    y = k.dft8(x, -1, KR)
    for k1 in range(1, 8): k.cmul(y[k1], y[k1], tw1[k1])
    for k1 in range(8): wr(a_t, k1 * 2048, y[k1])
    bar()
    for n1 in range(8): rd(y[n1], a_r1, n1 * 256)
    wait()
    z = k.dft8(y, -1, KR)
    for k2 in range(1, 8): k.cmul(z[k2], z[k2], tw2[k2])
    for k2 in range(8): wr(a_w2, B1 + k2 * 288, z[k2])
    bar()
    for n1 in range(8): rd(z[n1], a_r2, B1 + n1 * 32)
    wait()
    u = k.dft8(z, -1, KR)
    for k3 in range(1, 8): k.cmul(u[k3], u[k3], tw3[k3])
    for k3 in range(8): wr(a_r2, k3 * 32, u[k3])
    bar()
    for e in range(2):
        for m in range(4): rd(u[e * 4 + m], a_r3, e * 32 + m * 8)
    wait()
    v = k.dft4(u[0:4], -1) + k.dft4(u[4:8], -1)
    k.prof_mark()
    k.I("s_waitcnt vmcnt(0)")
    wp = k.pair()
    for i in range(8):
        wreg = wq[i // 4] + (i % 4)
        k.I(f"v_lshlrev_b32 v{wp}, 16, v{wreg}")
        k.I(f"v_and_b32 v{wp+1}, 0xffff0000, v{wreg}")
        k.cmul(v[i], v[i], wp)
    k.fpair(wp)
    u = k.dft4(v[0:4], +1) + k.dft4(v[4:8], +1)
    for e in range(2):
        for m in range(4): wr(a_r3, B1 + e * 32 + m * 8, u[e * 4 + m])
    bar()
    for k3 in range(8): rd(u[k3], a_r2, B1 + k3 * 32)
    wait()
    for k3 in range(1, 8): k.cmul(u[k3], u[k3], tw3[k3], conj=True)
    z = k.dft8(u, +1, KR)
    for n1 in range(8): wr(a_r2, n1 * 32, z[n1])
    bar()
    for k2 in range(8): rd(z[k2], a_w2, k2 * 288)
    wait()
    for k2 in range(1, 8): k.cmul(z[k2], z[k2], tw2[k2], conj=True)
    y = k.dft8(z, +1, KR)
    for n1 in range(8): wr(a_r1, B1 + n1 * 256, y[n1])
    bar()
    for k1 in range(8): rd(y[k1], a_t, B1 + k1 * 2048)
    wait()
    for k1 in range(1, 8): k.cmul(y[k1], y[k1], tw1[k1], conj=True)
    x = k.dft8(y, +1, KR)
    for n1 in range(8):
        k.I(f"buffer_store_dwordx2 {k.P(x[n1])}, v{voff}, s[{sY}:{sY+3}], s{20+n1} offen")
    k.prof_mark()
    k.I("s_waitcnt vmcnt(0)")
    k.prof_mark()
    k.prof_end()
    k.lab(END)
    k.I("s_endpgm")
    return dict(label="k2_kernel", k=k, grid=nwg, block=256, lds=2 * 18432)

if __name__ == "__main__":
    kd = build_k2()
    assemble_file([kd], "k2_only.s")
    print("vgprs", kd["k"].v.high, "instr", len(kd["k"].L))
```

```python
from fftd import *

NTR_WG = 275
def build_k3():
    k = DK("k3", vlo=1); k.kid = 2
    END = "k3_end"
    k.load_ptr(4, KA_WS)
    k.load_ptr(6, KA_X)
    k.I(f"s_cmp_ge_u32 s2, {256 + NTR_WG}")
    k.I(f"s_cbranch_scc1 {END}")
    vw = k.v.alloc(1)
    k.I(f"v_lshrrev_b32 v{vw}, 6, v0")
    k.I("v_and_b32 v0, 63, v0")
    k.nop(1)
    k.I(f"v_readfirstlane_b32 s3, v{vw}")
    k.v.release(vw)
    k.I(f"s_cmp_ge_u32 s2, 256")
    k.I(f"s_cbranch_scc1 k3_tr")
    sX, sI, sH, sN = 8, 12, 28, 32
    k.prof_start()
    k.I("s_waitcnt lgkmcnt(0)")
    k.prof_mark()
    k.make_srd(sX, 6, 0, 2048 * 640 * 2)
    k.make_srd(sI, 4, WS_X4T, XT_BYTES)
    k.make_srd(sH, 4, WS_H, 2048 * 640 * 2)
    k.make_srd(sN, 4, WS_YN, 2048 * 640 * 2)
    k.I("s_lshl_b32 s16, s2, 2"); k.I("s_add_u32 s16, s16, s3")
    k.I("s_mul_i32 s17, s16, 2560")
    k.I("s_mul_i32 s18, s3, 5760")
    k.I("s_mul_i32 s19, s2, 20544"); k.I("s_lshl_b32 s20, s3, 4"); k.I("s_add_u32 s19, s19, s20")
    vst = k.v.alloc(1); k.I(f"v_lshlrev_b32 v{vst}, 6, v0")
    def ex(m): k.I(f"s_mov_b64 exec, {m}")
    q = [k.quad() for _ in range(6)]
    for i in range(6):
        if i == 5: ex("1")
        k.I(f"s_add_u32 s{36+i}, s19, {i * 64 * 64}")
        k.I(f"buffer_load_dwordx4 v[{q[i]}:{q[i]+3}], v{vst}, s[{sI}:{sI+3}], s{36+i} offen")
    ex("-1")
    k.v.release(vst)
    xs = [k.pair() for _ in range(10)]
    v2 = k.v.alloc(1); k.I(f"v_lshlrev_b32 v{v2}, 1, v0")
    for j in range(10):
        k.I(f"v_mov_b32 v{xs[j]}, 0"); k.I(f"v_mov_b32 v{xs[j]+1}, 0")
    for j in range(10):
        k.I(f"buffer_load_short_d16_hi v{xs[j]}, v{v2}, s[{sX}:{sX+3}], s17 offen offset:{j*128}")
        k.I(f"buffer_load_short_d16_hi v{xs[j]+1}, v{v2}, s[{sX}:{sX+3}], s17 offen offset:{1280+j*128}")
    k.consts()
    tw1 = k.gen_tw(0, 640, 9)
    t1 = k.v.alloc(1)
    k.I(f"v_and_b32 v{t1}, 7, v0")
    tw2 = k.gen_tw(t1, 64, 7)
    hi = k.v.alloc(1)
    k.I(f"v_lshrrev_b32 v{hi}, 3, v0")
    a_t = k.v.alloc(1); k.I(f"v_lshlrev_b32 v{a_t}, 3, v0"); k.I(f"v_add_u32 v{a_t}, s18, v{a_t}")
    a_p2 = k.v.alloc(1)
    k.I(f"v_mul_u32_u24 v{a_p2}, 72, v{hi}"); k.I(f"v_add_u32 v{a_p2}, v{a_p2}, v{t1}")
    k.I(f"v_lshlrev_b32 v{a_p2}, 3, v{a_p2}"); k.I(f"v_add_u32 v{a_p2}, s18, v{a_p2}")
    a_w2 = k.v.alloc(1)
    k.I(f"v_mul_u32_u24 v{a_w2}, 72, v{hi}"); k.I(f"v_mad_u32_u24 v{a_w2}, v{t1}, 9, v{a_w2}")
    k.I(f"v_lshlrev_b32 v{a_w2}, 3, v{a_w2}"); k.I(f"v_add_u32 v{a_w2}, s18, v{a_w2}")
    a_z = k.v.alloc(1)
    k.I(f"v_mad_u32_u24 v{a_z}, v{t1}, 10, v{hi}")
    k.I(f"v_lshlrev_b32 v{a_z}, 3, v{a_z}"); k.I(f"v_add_u32 v{a_z}, s18, v{a_z}")
    a_m = k.v.alloc(1)
    k.I(f"v_sub_u32 v{a_m}, 320, v0"); k.I(f"v_lshlrev_b32 v{a_m}, 3, v{a_m}"); k.I(f"v_add_u32 v{a_m}, s18, v{a_m}")
    k.v.release(hi); k.v.release(t1)
    def wr(addr, off, r): k.I(f"ds_write_b64 v{addr}, {k.P(r)} offset:{off}")
    def rd(r, addr, off): k.I(f"ds_read_b64 {k.P(r)}, v{addr} offset:{off}")
    def wait(): k.I("s_waitcnt lgkmcnt(0)")
    k.prof_mark()
    k.I("s_waitcnt vmcnt(20)")
    k.prof_mark()
    zk = k.pair(); zm = k.pair()
    for i in range(6):
        A, B = q[i], q[i] + 2
        if i in (0, 5):
            ex("1")
            k.I(f"v_mov_b32 v{A+1}, 0"); k.I(f"v_mov_b32 v{B+1}, 0")
            if i == 0: ex("-1")
        k.cadd_pi(zk, A, B)
        k.I(f"v_pk_add_f32 {k.P(zm)}, {k.P(A)}, {k.P(B)} op_sel:[0,1] op_sel_hi:[1,0] neg_hi:[1,0]")
        wr(a_t, i * 512, zk)
        wr(a_m, (320 - 64 * i) * 8, zm)
        k.v.release(q[i], 4)
    ex("-1")
    k.fpair(zk); k.fpair(zm)
    A = [k.pair() for _ in range(8)]; Bq = [k.pair() for _ in range(8)]
    for kk in range(8): rd(A[kk], a_z, kk * 640)
    ex("0xffff")
    for kk in range(8): rd(Bq[kk], a_z, kk * 640 + 64)
    ex("-1")
    wait()
    A = k.dft8(A, +1, k.KR)
    for tp in range(1, 8): k.cmul(A[tp], A[tp], tw2[tp], conj=True)
    Bq = k.dft8(Bq, +1, k.KR)
    for tp in range(1, 8): k.cmul(Bq[tp], Bq[tp], tw2[tp], conj=True)
    for tp in range(8): wr(a_p2, tp * 72, A[tp])
    ex("0xffff")
    for tp in range(8): wr(a_p2, 4608 + tp * 72, Bq[tp])
    ex("-1")
    for r2 in range(8): rd(A[r2], a_w2, r2 * 8)
    ex("0xffff")
    for r2 in range(8): rd(Bq[r2], a_w2, 4608 + r2 * 8)
    ex("-1")
    wait()
    A = k.dft8(A, +1, k.KR)
    Bq = k.dft8(Bq, +1, k.KR)
    for j2 in range(8): wr(a_p2, j2 * 64, A[j2])
    ex("0xffff")
    for j2 in range(8): wr(a_p2, 4608 + j2 * 64, Bq[j2])
    ex("-1")
    y = A + Bq[:2]
    for p in Bq[2:]: k.fpair(p)
    for r in range(10): rd(y[r], a_t, r * 576)
    wait()
    for r in range(1, 10): k.cmul(y[r], y[r], tw1[r], conj=True)
    for w in tw1[1:] + tw2[1:]: k.fpair(w)
    z = k.dft10(y, +1, k.KC, k.KS)
    KSC = k.pair(); tmp = k.v.alloc(1)
    sc = 1.0 / (2 * 2048 * 640)
    k.I(f"v_mov_b32 v{KSC}, {hexf(sc)}"); k.I(f"v_mov_b32 v{KSC+1}, {hexf(sc)}")
    k.prof_mark()
    k.I("s_waitcnt vmcnt(0)")
    for j in range(10):
        k.kmul(z[j], z[j], KSC)
        k.bf16r_pair(z[j], z[j], tmp)
        k.cadd(z[j], z[j], xs[j])
        k.bf16r_pair(z[j], z[j], tmp)
    for p in xs: k.fpair(p)
    k.fpair(KSC); k.v.release(tmp)
    for j in range(10):
        k.I(f"buffer_store_short_d16_hi v{z[j]}, v{v2}, s[{sH}:{sH+3}], s17 offen offset:{j*128}")
        k.I(f"buffer_store_short_d16_hi v{z[j]+1}, v{v2}, s[{sH}:{sH+3}], s17 offen offset:{1280+j*128}")
    k.prof_mark()
    k.layernorm(z, 20)
    k.layernorm(z, 20)
    k.prof_mark()
    for j in range(10):
        k.I(f"buffer_store_short_d16_hi v{z[j]}, v{v2}, s[{sN}:{sN+3}], s17 offen offset:{j*128}")
        k.I(f"buffer_store_short_d16_hi v{z[j]+1}, v{v2}, s[{sN}:{sN+3}], s17 offen offset:{1280+j*128}")
    k.I("s_waitcnt vmcnt(0)")
    k.prof_mark()
    k.prof_end(3)
    k.I("s_endpgm")
    k.lab("k3_tr")
    k.load_ptr(8, KA_W1); k.load_ptr(10, KA_W2)
    k.I("s_sub_u32 s16, s2, 256"); k.I("s_lshl_b32 s16, s16, 2"); k.I("s_add_u32 s16, s16, s3")
    sS, sD = 12, 24
    k.I("s_waitcnt lgkmcnt(0)")
    k.I("s_cmp_ge_u32 s16, 560")
    k.I("s_cbranch_scc1 k3_w2set")
    k.make_srd(sS, 8, 0, 640 * 3456); k.make_srd(sD, 4, WS_W1T, 1728 * 1280)
    k.I(f"s_mul_hi_u32 s17, s16, 0x{(1<<32)//40+1:x}")
    k.I("s_mul_i32 s18, s17, 40"); k.I("s_sub_u32 s18, s16, s18")
    k.I("s_mov_b32 s19, 3456"); k.I("s_mov_b32 s20, 1280"); k.I("s_mov_b32 s21, 1728")
    k.I("s_branch k3_trc")
    k.lab("k3_w2set")
    k.I("s_sub_u32 s16, s16, 560")
    k.make_srd(sS, 10, 0, 1728 * 1280); k.make_srd(sD, 4, WS_W2T, 640 * 3456)
    k.I(f"s_mul_hi_u32 s17, s16, 0x{(1<<32)//108+1:x}")
    k.I("s_mul_i32 s18, s17, 108"); k.I("s_sub_u32 s18, s16, s18")
    k.I("s_mov_b32 s19, 1280"); k.I("s_mov_b32 s20, 3456"); k.I("s_mov_b32 s21, 640")
    k.lab("k3_trc")
    vn = k.v.alloc(1)
    k.I("s_lshl_b32 s22, s17, 7")
    k.I(f"v_lshl_add_u32 v{vn}, v0, 1, s22")
    k.I(f"v_cmp_gt_u32 vcc, s21, v{vn}")
    k.I("s_and_saveexec_b64 s[28:29], vcc")
    k.I(f"s_cbranch_execz {END}")
    vso = k.v.alloc(1); k.I(f"v_lshlrev_b32 v{vso}, 1, v{vn}")
    vdo = k.v.alloc(1); k.I(f"v_mul_lo_u32 v{vdo}, v{vn}, s20")
    k.I("s_lshl_b32 s23, s18, 4"); k.I("s_mul_i32 s23, s23, s19")
    rows = [k.v.alloc(1) for _ in range(16)]
    for r in range(16):
        k.I(f"buffer_load_dword v{rows[r]}, v{vso}, s[{sS}:{sS+3}], s23 offen")
        k.I("s_add_u32 s23, s23, s19")
    o0 = [k.quad(), k.quad()]; o1 = [k.quad(), k.quad()]
    k.I("s_mov_b32 s30, 0x05040100"); k.I("s_mov_b32 s31, 0x07060302")
    k.I("s_waitcnt vmcnt(0)")
    for p in range(8):
        k.I(f"v_perm_b32 v{o0[p//4]+p%4}, v{rows[2*p+1]}, v{rows[2*p]}, s30")
        k.I(f"v_perm_b32 v{o1[p//4]+p%4}, v{rows[2*p+1]}, v{rows[2*p]}, s31")
    k.I("s_lshl_b32 s23, s18, 5")
    k.I("s_add_u32 s32, s23, s20")
    for hh in range(2):
        k.I(f"buffer_store_dwordx4 v[{o0[hh]}:{o0[hh]+3}], v{vdo}, s[{sD}:{sD+3}], s23 offen offset:{16*hh}")
        k.I(f"buffer_store_dwordx4 v[{o1[hh]}:{o1[hh]+3}], v{vdo}, s[{sD}:{sD+3}], s32 offen offset:{16*hh}")
    k.lab(END)
    k.I("s_endpgm")
    return dict(label="k3_kernel", k=k, grid=256 + NTR_WG, block=256, lds=4 * 5760)

if __name__ == "__main__":
    from k1 import build_k1
    from k2 import build_k2
    kd = build_k3()
    print("vgprs", kd["k"].v.high, "instr", len(kd["k"].L))
    assemble_file([build_k1(), build_k2(), kd], "k123.s")
    from gemm import build_k4, build_k5
    assemble_file([build_k1(), build_k2(), build_k3(), build_k4(), build_k5()], "cdna_kernels/" + KNAME + ".s")
```

```python
import sys
from common import *
prof = "prof" in sys.argv
GK.prof = prof
from k1 import build_k1
from k2 import build_k2
from k3 import build_k3
from gemm2 import build_k4, build_k5
out = [a for a in sys.argv[1:] if a.endswith(".s")]
out = out[0] if out else "v2.s"
ks = [build_k1(), build_k2(), build_k3(), build_k4(prof=prof), build_k5(prof=prof)]
for kd in ks: print(kd["label"], "vgprs", kd["k"].v.high, "instr", len(kd["k"].L), "grid", kd["grid"], "lds", kd["lds"])
assemble_file(ks, out)
```

```python
from common import *

def build_gemm2(name, M, N, K, TM, TN, mode, NST=4, prof=False, xmap=None, spec=True, NPRE=2, NRAMP=2):
    k = GK(name, vlo=1)
    END = name + "_end"
    NTN = (N + TN - 1) // TN; NTM = M // TM
    nwg = NTN * NTM
    MT = TM // 64; NT = TN // 16
    GA = TM // 8; GB = (TN + 7) // 8
    assert GA % 4 == 0
    PERA = GA // 4; PERB = (GB + 3) // 4; PER = PERA + PERB
    STAGE = PER * 4 * 1024
    NIT = K // 64
    k.load_ptr(4, KA_WS)
    k.load_ptr(6, KA_B1 if mode == 1 else KA_B2)
    if mode == 2: k.load_ptr(36, KA_OUT)
    if prof: k.load_ptr(38, KA_DBG)
    k.I(f"s_cmp_ge_u32 s2, {nwg}")
    k.I(f"s_cbranch_scc1 {END}")
    if prof: k.I("s_memtime s[60:61]")
    sA, sB, sBias, sC, sR, sDb = 8, 12, 16, 20, 24, 56
    vw = k.v.alloc(1)
    k.I(f"v_lshrrev_b32 v{vw}, 6, v0")
    lane = k.v.alloc(1); k.I(f"v_and_b32 v{lane}, 63, v0")
    k.I(f"v_readfirstlane_b32 s3, v{vw}")
    if spec:
        k.I("s_lshr_b32 s70, s3, 2"); k.I("s_and_b32 s3, s3, 3")
    k.I("s_waitcnt lgkmcnt(0)")
    if prof: k.I("s_memtime s[68:69]")
    if mode == 1:
        k.make_srd(sA, 4, WS_YN, M * K * 2); k.make_srd(sB, 4, WS_W1T, N * K * 2)
        k.make_srd(sC, 4, WS_H1, M * N * 2)
    else:
        k.make_srd(sA, 4, WS_H1, M * K * 2); k.make_srd(sB, 4, WS_W2T, N * K * 2)
        k.make_srd(sC, 36, 0, M * N * 2); k.make_srd(sR, 4, WS_H, M * N * 2)
    k.make_srd(sBias, 6, 0, N * 2)
    if prof: k.make_srd(sDb, 38, 0, 256)
    lg = int(math.log2(NTM)); assert 1 << lg == NTM
    if xmap is None:
        k.I(f"s_and_b32 s29, s2, {NTM-1}"); k.I(f"s_lshr_b32 s30, s2, {lg}")
    else:
        xm, xn = xmap; bm = NTM // xm; bn = NTN // xn
        assert xm * xn == 8 and bm * bn * 8 == nwg
        lbm = int(math.log2(bm)); lxm = int(math.log2(xm))
        k.I("s_and_b32 s33, s2, 7"); k.I("s_lshr_b32 s34, s2, 3")
        k.I(f"s_and_b32 s29, s33, {xm-1}"); k.I(f"s_lshl_b32 s29, s29, {lbm}")
        k.I(f"s_and_b32 s30, s34, {bm-1}"); k.I("s_add_u32 s29, s29, s30")
        k.I(f"s_lshr_b32 s30, s33, {lxm}"); k.I(f"s_mul_i32 s30, s30, {bn}")
        k.I(f"s_lshr_b32 s34, s34, {lbm}"); k.I("s_add_u32 s30, s30, s34")
    k.I(f"s_mul_i32 s31, s29, {TM}")
    k.I(f"s_mul_i32 s32, s30, {TN}")
    vr = k.v.alloc(1); vc = k.v.alloc(1); vsw = k.v.alloc(1)
    k.I(f"v_lshrrev_b32 v{vr}, 3, v{lane}")
    k.I(f"v_lshrrev_b32 v{vsw}, 4, v{lane}")
    k.I("s_and_b32 s33, s3, 1"); k.I("s_lshl_b32 s33, s33, 2")
    k.I(f"v_add_u32 v{vsw}, s33, v{vsw}")
    k.I(f"v_and_b32 v{vc}, 7, v{lane}")
    k.I(f"v_xor_b32 v{vc}, v{vc}, v{vsw}")
    k.I("s_lshl_b32 s33, s3, 3")
    vgA = k.v.alloc(1); vgB = k.v.alloc(1)
    k.I("s_add_u32 s34, s33, s31"); k.I(f"v_add_u32 v{vgA}, s34, v{vr}")
    k.I(f"v_mul_u32_u24 v{vgA}, {K*2}, v{vgA}"); k.I(f"v_lshl_add_u32 v{vgA}, v{vc}, 4, v{vgA}")
    k.I("s_add_u32 s34, s33, s32"); k.I(f"v_add_u32 v{vgB}, s34, v{vr}")
    k.I(f"v_mul_u32_u24 v{vgB}, {K*2}, v{vgB}"); k.I(f"v_lshl_add_u32 v{vgB}, v{vc}, 4, v{vgB}")
    k.v.release(vr); k.v.release(vc); k.v.release(vsw)
    k.I("s_lshl_b32 s35, s3, 10")
    def dma(j, perb=PERB):
        slot = j % NST
        for i in range(PERA):
            k.I(f"s_add_u32 m0, s35, {slot*STAGE + i*4096}")
            k.I(f"s_mov_b32 s40, {i*32*K*2 + j*128}")
            k.I(f"buffer_load_dwordx4 v{vgA}, s[{sA}:{sA+3}], s40 offen lds")
        for i in range(perb):
            k.I(f"s_add_u32 m0, s35, {slot*STAGE + GA*1024 + i*4096}")
            k.I(f"s_mov_b32 s41, {i*32*K*2 + j*128}")
            k.I(f"buffer_load_dwordx4 v{vgB}, s[{sB}:{sB+3}], s41 offen lds")
    if spec:
        CONS = name + "_cons"
        k.I("s_cmp_eq_u32 s70, 0"); k.I(f"s_cbranch_scc1 {CONS}")
        rem = GB % 4
        variants = [PERB] if rem == 0 else [PERB, PERB - 1]
        L2 = name + "_ld2"
        if rem:
            k.I(f"s_cmp_ge_u32 s3, {rem}"); k.I(f"s_cbranch_scc1 {L2}")
        for vi, perb in enumerate(variants):
            if vi == 1: k.lab(L2)
            per = PERA + perb
            issued = []
            def issue(st):
                dma(st, perb); issued.append(st)
            def wait_for(st):
                k.I(f"s_waitcnt vmcnt({per*(len(issued) - 1 - issued.index(st))})")
            for st in range(min(NPRE, NIT)): issue(st)
            wait_for(0)
            k.I("s_barrier")
            for j in range(NIT):
                if j + 1 < NIT: wait_for(j + 1)
                k.I("s_barrier")
                cnt_i = 0
                while len(issued) < NIT and len(issued) <= j + NST - 1 and cnt_i < NRAMP:
                    issue(len(issued)); cnt_i += 1
            k.I("s_endpgm")
        k.lab(CONS)
    else:
        for j in range(NST - 1): dma(j)
    l15 = k.v.alloc(1); k.I(f"v_and_b32 v{l15}, 15, v{lane}")
    lq = k.v.alloc(1); k.I(f"v_lshrrev_b32 v{lq}, 4, v{lane}")
    vf0 = k.v.alloc(1); vt = k.v.alloc(1)
    k.I(f"v_lshrrev_b32 v{vt}, 1, v{l15}"); k.I(f"v_xor_b32 v{vt}, v{vt}, v{lq}")
    k.I(f"v_lshlrev_b32 v{vf0}, 7, v{l15}"); k.I(f"v_lshl_add_u32 v{vf0}, v{vt}, 4, v{vf0}")
    k.v.release(vt)
    k.I(f"s_mul_i32 s33, s3, {MT*16*128}")
    vm = [[k.v.alloc(1) for _ in range(2)] for s in range(NST)]
    vn = [[k.v.alloc(1) for _ in range(2)] for s in range(NST)]
    for s in range(NST):
        k.I(f"s_add_u32 s34, s33, {s*STAGE}")
        k.I(f"v_add_u32 v{vm[s][0]}, s34, v{vf0}"); k.I(f"v_xor_b32 v{vm[s][1]}, 64, v{vm[s][0]}")
        k.I(f"v_add_u32 v{vn[s][0]}, 0x{s*STAGE + GA*1024:x}, v{vf0}"); k.I(f"v_xor_b32 v{vn[s][1]}, 64, v{vn[s][0]}")
    vbn = k.v.alloc(1)
    k.I(f"v_lshl_add_u32 v{vbn}, v{lq}, 2, s32"); k.I(f"v_lshlrev_b32 v{vbn}, 1, v{vbn}")
    bias = [k.pair() for nt in range(NT)]
    for nt in range(NT):
        k.I(f"buffer_load_dwordx2 {k.P(bias[nt])}, v{vbn}, s[{sBias}:{sBias+3}], 0 offen offset:{nt*32}")
    vo = k.v.alloc(1)
    k.I(f"s_mul_i32 s33, s3, {MT*16}"); k.I("s_add_u32 s33, s33, s31")
    k.I(f"v_add_u32 v{vo}, s33, v{l15}"); k.I(f"v_mul_u32_u24 v{vo}, {N*2}, v{vo}")
    k.I(f"v_add_u32 v{vo}, v{vo}, v{vbn}")
    res = None
    if mode == 2:
        res = [[k.pair() for nt in range(NT)] for mt in range(MT)]
        for nt in range(NT):
            for mt in range(MT):
                k.I(f"s_mov_b32 s42, {mt*16*N*2}")
                k.I(f"buffer_load_dwordx2 {k.P(res[mt][nt])}, v{vo}, s[{sR}:{sR+3}], s42 offen offset:{nt*32}")
    acc = [[k.quad() for nt in range(NT)] for mt in range(MT)]
    for mt in range(MT):
        for nt in range(NT):
            for r in range(4): k.I(f"v_mov_b32 v{acc[mt][nt]+r}, 0")
    fn = [[k.quad() for _ in range(NT)] for b in range(2)]
    fm = [[k.quad() for _ in range(MT)] for b in range(2)]
    def reads(j, ks, b):
        slot = j % NST
        for mt in range(MT):
            k.I(f"ds_read_b128 v[{fm[b][mt]}:{fm[b][mt]+3}], v{vm[slot][ks]} offset:{mt*2048}")
        for nt in range(NT):
            k.I(f"ds_read_b128 v[{fn[b][nt]}:{fn[b][nt]+3}], v{vn[slot][ks]} offset:{nt*2048}")
    def mfmas(b):
        for nt in range(NT):
            for mt in range(MT):
                a = acc[mt][nt]
                k.I(f"v_mfma_f32_16x16x32_bf16 v[{a}:{a+3}], v[{fn[b][nt]}:{fn[b][nt]+3}], v[{fm[b][mt]}:{fm[b][mt]+3}], v[{a}:{a+3}]")
    NF = MT + NT
    inflight_after0 = min(NST - 1, NIT) - 1
    if not spec: k.I(f"s_waitcnt vmcnt({PER*inflight_after0})")
    k.I("s_barrier")
    if prof: k.I("s_memtime s[62:63]")
    reads(0, 0, 0)
    for j in range(NIT):
        if j + 1 < NIT:
            newer = min(j + NST - 2, NIT - 1) - (j + 1)
            if not spec: k.I(f"s_waitcnt vmcnt({PER*newer})")
        k.I("s_barrier")
        if j + NST - 1 < NIT and not spec: dma(j + NST - 1)
        reads(j, 1, 1)
        k.I(f"s_waitcnt lgkmcnt({NF})")
        mfmas(0)
        if j + 1 < NIT:
            reads(j + 1, 0, 0)
            k.I(f"s_waitcnt lgkmcnt({NF})")
        else:
            k.I("s_waitcnt lgkmcnt(0)")
        mfmas(1)
    if prof: k.I("s_memtime s[64:65]")
    k.I("s_waitcnt vmcnt(0)")
    k.nop(12)
    c1 = -2 * math.log2(math.e) * math.sqrt(2 / math.pi); c2 = c1 * 0.044715
    if mode == 1:
        cc1 = k.pair(); cc2 = k.pair(); one = k.pair()
        for p, val in ((cc1, c1), (cc2, c2), (one, 1.0)):
            k.I(f"v_mov_b32 v{p}, {hexf(val)}"); k.I(f"v_mov_b32 v{p+1}, {hexf(val)}")
    t = [k.pair(), k.pair()]; y = [k.pair(), k.pair()]
    pk = k.pair(); bq = [k.pair(), k.pair()]
    cnt = 0
    for nt in range(NT):
        if N % TN and nt > 0:
            k.I(f"s_add_u32 s33, s32, {nt*16}"); k.I(f"s_cmp_ge_u32 s33, {N}")
            k.I(f"s_cbranch_scc1 {END}")
        b = bias[nt]
        k.I(f"v_lshlrev_b32 v{bq[0]}, 16, v{b}"); k.I(f"v_and_b32 v{bq[0]+1}, 0xffff0000, v{b}")
        k.I(f"v_lshlrev_b32 v{bq[1]}, 16, v{b+1}"); k.I(f"v_and_b32 v{bq[1]+1}, 0xffff0000, v{b+1}")
        for mt in range(MT):
            a = acc[mt][nt]
            k.I(f"v_cvt_pk_bf16_f32 v{pk}, v{a}, v{a+1}"); k.I(f"v_cvt_pk_bf16_f32 v{pk+1}, v{a+2}, v{a+3}")
            for h in range(2):
                k.I(f"v_lshlrev_b32 v{t[h]}, 16, v{pk+h}"); k.I(f"v_and_b32 v{t[h]+1}, 0xffff0000, v{pk+h}")
            for h in range(2): k.I(f"v_pk_add_f32 {k.P(t[h])}, {k.P(t[h])}, {k.P(bq[h])}")
            k.I(f"v_cvt_pk_bf16_f32 v{pk}, v{t[0]}, v{t[0]+1}"); k.I(f"v_cvt_pk_bf16_f32 v{pk+1}, v{t[1]}, v{t[1]+1}")
            for h in range(2):
                k.I(f"v_lshlrev_b32 v{t[h]}, 16, v{pk+h}"); k.I(f"v_and_b32 v{t[h]+1}, 0xffff0000, v{pk+h}")
            if mode == 1:
                for h in range(2): k.I(f"v_pk_mul_f32 {k.P(y[h])}, {k.P(t[h])}, {k.P(t[h])}")
                for h in range(2): k.I(f"v_pk_fma_f32 {k.P(y[h])}, {k.P(y[h])}, {k.P(cc2)}, {k.P(cc1)}")
                for h in range(2): k.I(f"v_pk_mul_f32 {k.P(y[h])}, {k.P(y[h])}, {k.P(t[h])}")
                for h in range(2):
                    k.I(f"v_exp_f32 v{y[h]}, v{y[h]}"); k.I(f"v_exp_f32 v{y[h]+1}, v{y[h]+1}")
                k.nop(1)
                for h in range(2): k.I(f"v_pk_add_f32 {k.P(y[h])}, {k.P(y[h])}, {k.P(one)}")
                for h in range(2):
                    k.I(f"v_rcp_f32 v{y[h]}, v{y[h]}"); k.I(f"v_rcp_f32 v{y[h]+1}, v{y[h]+1}")
                k.nop(1)
                for h in range(2): k.I(f"v_pk_mul_f32 {k.P(t[h])}, {k.P(t[h])}, {k.P(y[h])}")
            else:
                if cnt == 0: k.I("s_waitcnt vmcnt(0)")
                rr = res[mt][nt]
                for h in range(2):
                    k.I(f"v_lshlrev_b32 v{y[h]}, 16, v{rr+h}"); k.I(f"v_and_b32 v{y[h]+1}, 0xffff0000, v{rr+h}")
                for h in range(2): k.I(f"v_pk_add_f32 {k.P(t[h])}, {k.P(t[h])}, {k.P(y[h])}")
            k.I(f"v_cvt_pk_bf16_f32 v{pk}, v{t[0]}, v{t[0]+1}"); k.I(f"v_cvt_pk_bf16_f32 v{pk+1}, v{t[1]}, v{t[1]+1}")
            k.I(f"s_mov_b32 s42, {mt*16*N*2}")
            k.I(f"buffer_store_dwordx2 {k.P(pk)}, v{vo}, s[{sC}:{sC+3}], s42 offen offset:{nt*32}")
            k.nop(2)
            cnt += 1
    if prof:
        k.I("s_memtime s[66:67]")
        k.I("s_waitcnt lgkmcnt(0)")
        k.I("s_sub_u32 s68, s68, s60"); k.I("s_sub_u32 s62, s62, s60"); k.I("s_sub_u32 s64, s64, s60"); k.I("s_sub_u32 s66, s66, s60")
        vd = k.v.alloc(1); vz = k.v.alloc(1)
        k.I("s_cmp_lg_u32 s2, 0"); k.I(f"s_cbranch_scc1 {END}")
        k.I("s_cmp_lg_u32 s3, 0"); k.I(f"s_cbranch_scc1 {END}")
        k.I(f"v_mov_b32 v{vz}, 0")
        for i, sr in enumerate((62, 64, 66, 68)):
            k.I(f"v_mov_b32 v{vd}, s{sr}")
            k.I(f"buffer_store_dword v{vd}, v{vz}, s[{sDb}:{sDb+3}], 0 offen offset:{4*i}")
    k.lab(END)
    k.I("s_endpgm")
    return dict(label=name + "_kernel", k=k, grid=nwg, block=512 if spec else 256, lds=NST * STAGE)

def build_k4(**kw): return build_gemm2("k4", 2048, 1728, 640, 128, 112, 1, NST=kw.get("NST", 4), prof=kw.get("prof", False), xmap=kw.get("xmap", (4, 2)))
def build_k5(**kw): return build_gemm2("k5", 2048, 640, 1728, 64, 80, 2, NST=kw.get("NST", 6), prof=kw.get("prof", False), xmap=kw.get("xmap", (4, 2)))

if __name__ == "__main__":
    import sys
    prof = len(sys.argv) > 1
    for f in (build_k4, build_k5):
        kd = f(prof=prof); print(kd["label"], "vgprs", kd["k"].v.high, "instr", len(kd["k"].L), "grid", kd["grid"], "lds", kd["lds"])
    from k1 import build_k1
    from k2 import build_k2
    from k3 import build_k3
    assemble_file([build_k1(), build_k2(), build_k3(), build_k4(prof=prof), build_k5(prof=prof)], "v2.s")
```

```python
from common import *

def build_k2(nwg=321):
    k = GK("k2", vlo=1); k.kid = 1
    END = "k2_end"
    k.load_ptr(4, KA_WS)
    k.I(f"s_cmp_ge_u32 s2, {nwg}")
    k.I(f"s_cbranch_scc1 {END}")
    sX, sY, sW = 8, 12, 16
    k.prof_start()
    k.I("s_waitcnt lgkmcnt(0)")
    k.prof_mark()
    k.make_srd(sX, 4, WS_X1T, XT_BYTES)
    k.make_srd(sY, 4, WS_X4T, XT_BYTES)
    k.make_srd(sW, 4, WS_WTP, WTP_BYTES)
    k.I("s_lshl_b32 s20, s2, 14")
    for n1 in range(1, 8):
        k.I(f"s_add_u32 s{20+n1}, s20, {n1*2048}")
    k.I("s_lshl_b32 s40, s2, 6")
    for n1 in range(1, 8):
        k.I(f"s_add_u32 s{40+n1}, s40, {n1*32*20544}")
    k.I("s_lshl_b32 s28, s2, 13")
    voff = k.v.alloc(1); k.I(f"v_lshlrev_b32 v{voff}, 3, v0")
    vg = k.v.alloc(1); vg2 = k.v.alloc(1)
    k.I(f"v_lshrrev_b32 v{vg}, 3, v0"); k.I(f"v_mul_u32_u24 v{vg}, 20544, v{vg}")
    k.I(f"v_and_b32 v{vg2}, 7, v0"); k.I(f"v_lshl_add_u32 v{vg}, v{vg2}, 3, v{vg}")
    k.v.release(vg2)
    vw = k.v.alloc(1); k.I(f"v_lshlrev_b32 v{vw}, 5, v0")
    x = [k.pair() for _ in range(8)]
    for n1 in range(8):
        k.I(f"buffer_load_dwordx2 {k.P(x[n1])}, v{voff}, s[{sX}:{sX+3}], s{20+n1} offen")
    wq = [k.quad(), k.quad()]
    k.I(f"buffer_load_dwordx4 v[{wq[0]}:{wq[0]+3}], v{vw}, s[{sW}:{sW+3}], s28 offen")
    k.I(f"buffer_load_dwordx4 v[{wq[1]}:{wq[1]+3}], v{vw}, s[{sW}:{sW+3}], s28 offen offset:16")
    KR = k.pair()
    k.I(f"v_mov_b32 v{KR}, {hexf(np.sqrt(0.5))}")
    k.I(f"v_mov_b32 v{KR+1}, {hexf(np.sqrt(0.5))}")
    t1 = k.v.alloc(1)
    tw1 = k.gen_tw(0, 2048, 7)
    k.I(f"v_and_b32 v{t1}, 31, v0")
    tw2 = k.gen_tw(t1, 256, 7)
    k.I(f"v_and_b32 v{t1}, 3, v0")
    tw3 = k.gen_tw(t1, 32, 7)
    B1 = 18432
    a_t = voff
    a_r1 = k.v.alloc(1)
    k.I(f"v_lshrrev_b32 v{a_r1}, 5, v0")
    k.I(f"v_lshlrev_b32 v{a_r1}, 8, v{a_r1}")
    k.I(f"v_and_b32 v{t1}, 31, v0")
    k.I(f"v_add_u32 v{a_r1}, v{a_r1}, v{t1}")
    k.I(f"v_lshlrev_b32 v{a_r1}, 3, v{a_r1}")
    a_w2 = k.v.alloc(1)
    k.I(f"v_lshrrev_b32 v{a_w2}, 5, v0")
    k.I(f"v_mul_u32_u24 v{a_w2}, 288, v{a_w2}")
    k.I(f"v_add_u32 v{a_w2}, v{a_w2}, v{t1}")
    k.I(f"v_lshlrev_b32 v{a_w2}, 3, v{a_w2}")
    a_q = k.v.alloc(1)
    k.I(f"v_lshrrev_b32 v{a_q}, 2, v0")
    k.I(f"v_mul_u32_u24 v{a_q}, 36, v{a_q}")
    a_r2 = k.v.alloc(1)
    k.I(f"v_and_b32 v{t1}, 3, v0")
    k.I(f"v_add_u32 v{a_r2}, v{a_q}, v{t1}")
    k.I(f"v_lshlrev_b32 v{a_r2}, 3, v{a_r2}")
    a_r3 = k.v.alloc(1)
    k.I(f"v_lshlrev_b32 v{t1}, 3, v{t1}")
    k.I(f"v_add_u32 v{a_r3}, v{a_q}, v{t1}")
    k.I(f"v_lshlrev_b32 v{a_r3}, 3, v{a_r3}")
    k.v.release(a_q); k.v.release(t1)

    def wr(addr, off, r): k.I(f"ds_write_b64 v{addr}, {k.P(r)} offset:{off}")
    def rd(r, addr, off): k.I(f"ds_read_b64 {k.P(r)}, v{addr} offset:{off}")
    def bar():
        k.I("s_waitcnt lgkmcnt(0)"); k.I("s_barrier")
    def wait(): k.I("s_waitcnt lgkmcnt(0)")

    k.prof_mark()
    k.I("s_waitcnt vmcnt(2)")
    k.prof_mark()
    y = k.dft8(x, -1, KR)
    for k1 in range(1, 8): k.cmul(y[k1], y[k1], tw1[k1])
    for k1 in range(8): wr(a_t, k1 * 2048, y[k1])
    bar()
    for n1 in range(8): rd(y[n1], a_r1, n1 * 256)
    wait()
    z = k.dft8(y, -1, KR)
    for k2 in range(1, 8): k.cmul(z[k2], z[k2], tw2[k2])
    for k2 in range(8): wr(a_w2, B1 + k2 * 288, z[k2])
    bar()
    for n1 in range(8): rd(z[n1], a_r2, B1 + n1 * 32)
    wait()
    u = k.dft8(z, -1, KR)
    for k3 in range(1, 8): k.cmul(u[k3], u[k3], tw3[k3])
    for k3 in range(8): wr(a_r2, k3 * 32, u[k3])
    bar()
    for e in range(2):
        for m in range(4): rd(u[e * 4 + m], a_r3, e * 32 + m * 8)
    wait()
    v = k.dft4(u[0:4], -1) + k.dft4(u[4:8], -1)
    k.prof_mark()
    k.I("s_waitcnt vmcnt(0)")
    wp = k.pair()
    for i in range(8):
        wreg = wq[i // 4] + (i % 4)
        k.I(f"v_lshlrev_b32 v{wp}, 16, v{wreg}")
        k.I(f"v_and_b32 v{wp+1}, 0xffff0000, v{wreg}")
        k.cmul(v[i], v[i], wp)
    k.fpair(wp)
    u = k.dft4(v[0:4], +1) + k.dft4(v[4:8], +1)
    for e in range(2):
        for m in range(4): wr(a_r3, B1 + e * 32 + m * 8, u[e * 4 + m])
    bar()
    for k3 in range(8): rd(u[k3], a_r2, B1 + k3 * 32)
    wait()
    for k3 in range(1, 8): k.cmul(u[k3], u[k3], tw3[k3], conj=True)
    z = k.dft8(u, +1, KR)
    for n1 in range(8): wr(a_r2, n1 * 32, z[n1])
    bar()
    for k2 in range(8): rd(z[k2], a_w2, k2 * 288)
    wait()
    for k2 in range(1, 8): k.cmul(z[k2], z[k2], tw2[k2], conj=True)
    y = k.dft8(z, +1, KR)
    for n1 in range(8): wr(a_r1, B1 + n1 * 256, y[n1])
    bar()
    for k1 in range(8): rd(y[k1], a_t, B1 + k1 * 2048)
    wait()
    for k1 in range(1, 8): k.cmul(y[k1], y[k1], tw1[k1], conj=True)
    x = k.dft8(y, +1, KR)
    for n1 in range(8):
        k.I(f"buffer_store_dwordx2 {k.P(x[n1])}, v{vg}, s[{sY}:{sY+3}], s{40+n1} offen")
    k.prof_mark()
    k.I("s_waitcnt vmcnt(0)")
    k.prof_mark()
    k.prof_end()
    k.lab(END)
    k.I("s_endpgm")
    return dict(label="k2_kernel", k=k, grid=nwg, block=256, lds=2 * 18432)

if __name__ == "__main__":
    kd = build_k2()
    assemble_file([kd], "k2_only.s")
    print("vgprs", kd["k"].v.high, "instr", len(kd["k"].L))
```
